```python
import torch

def _softmax(x, axis=-1):
    return torch.softmax(x, dim=axis)

def _gelu(x):
    return torch.nn.functional.gelu(x, approximate='tanh')

def _silu(x):
    return torch.nn.functional.silu(x)

def _sigmoid(x):
    return torch.sigmoid(x)

def _layernorm(x, axis=-1, eps=1e-05):
    m = x.mean(dim=axis, keepdim=True)
    v = x.var(dim=axis, keepdim=True, unbiased=False)
    return (x - m) / torch.sqrt(v + eps)

def _scatter_add(tgt, idx, src, axis=0):
    return tgt.clone().index_add_(axis, idx, src)

def _segment_sum(src, seg, n):
    out = torch.zeros((n,) + src.shape[1:], dtype=src.dtype)
    return out.index_add_(0, seg, src)

def _pad(x, pw):
    flat = tuple((v for pair in reversed(pw) for v in pair))
    return torch.nn.functional.pad(x, flat)
kernel_name = 'adaLN_cond__sliding_block_cached__glu_gated_geglu__prompt'

def setup_inputs():

    _w = lambda a: (lambda t: t.to(torch.bfloat16) if t.is_floating_point() else t)(torch.as_tensor(a))

    def _A_setup():
        B, Sq, D = (1, 2048, 576)
        Hq, Hkv, Sk, Dh = (32, 16, 2048, 128)
        assert Hq % Hkv == 0, (Hq, Hkv)
        return {'x': _w((lambda *s: torch.randn(*s, dtype=torch.bfloat16) * 0.05)(B, Sq, D)), 'k_cache': _w((lambda *s: torch.randn(*s, dtype=torch.bfloat16) * 1.6)(B, Hkv, Sk, Dh)), 'v_cache': _w((lambda *s: torch.randn(*s, dtype=torch.bfloat16) * 0.8)(B, Hkv, Sk, Dh)), 'wq': _w((lambda *s: torch.randn(*s, dtype=torch.bfloat16) * 1.6)(D, Hq * Dh) * D ** (-0.5)), 'wo': _w((lambda *s: torch.randn(*s, dtype=torch.bfloat16) * 0.8)(Hq * Dh, D) * (Hq * Dh) ** (-0.5))}
    _A_in = _A_setup()

    def _B_setup():
        B, S, Dm, Df = (1, 2048, 576, 4608)
        return {'x': _w((lambda *s: torch.randn(*s, dtype=torch.bfloat16) * 0.05)(B, S, Dm)), 'w_gate': _w((lambda *s: torch.randn(*s, dtype=torch.bfloat16) * 0.8)(Dm, Df) * Dm ** (-0.5)), 'w_up': _w((lambda *s: torch.randn(*s, dtype=torch.bfloat16) * 0.8)(Dm, Df) * Dm ** (-0.5)), 'w_down': _w((lambda *s: torch.randn(*s, dtype=torch.bfloat16) * 0.8)(Df, Dm) * Df ** (-0.5))}
    _B_in = _B_setup()
    return {'A_x': _A_in['x'], 'A_k_cache': _A_in['k_cache'], 'A_v_cache': _A_in['v_cache'], 'A_wq': _A_in['wq'], 'A_wo': _A_in['wo'], 'B_x': _B_in['x'], 'B_w_gate': _B_in['w_gate'], 'B_w_up': _B_in['w_up'], 'B_w_down': _B_in['w_down'], 'c': _w((lambda *s: torch.randn(*s, dtype=torch.bfloat16) * 0.1)(1, 576) * 8.0), 'w_mod': _w((lambda *s: torch.randn(*s, dtype=torch.bfloat16) * 0.1)(576, 6 * 576) * 576 ** (-0.5) * 8.0)}

def reference(A_x, A_k_cache, A_v_cache, A_wq, A_wo, B_x, B_w_gate, B_w_up, B_w_down, c, w_mod):

    def _A_ref(x, k_cache, v_cache, wq, wo):
        B, Sq, D = x.shape
        Hq, Dh = (32, 128)
        Hkv, Sk = (k_cache.shape[1], k_cache.shape[2])
        W = min(4096, max(256, Sk // 4))
        rep = Hq // Hkv
        q = (lambda x, *d: x.permute(*d))((x @ wq).reshape(B, Sq, Hq, Dh), 0, 2, 1, 3)
        k = (lambda x, n, axis: torch.repeat_interleave(x, n, dim=axis))(k_cache[:, :, Sk - W:, :], rep, axis=1)
        v = (lambda x, n, axis: torch.repeat_interleave(x, n, dim=axis))(v_cache[:, :, Sk - W:, :], rep, axis=1)
        scores = torch.einsum('bhqd,bhkd->bhqk', q, k) * Dh ** (-0.5)
        p = _softmax(scores, axis=-1)
        o = torch.einsum('bhqk,bhkd->bhqd', p, v)
        return (lambda x, *d: x.permute(*d))(o, 0, 2, 1, 3).reshape(B, Sq, Hq * Dh) @ wo

    def _B_ref(x, w_gate, w_up, w_down):
        g = torch.einsum('bsd,df->bsf', x, w_gate)
        u = torch.einsum('bsd,df->bsf', x, w_up)
        h = _gelu(g) * u
        return torch.einsum('bsf,fd->bsd', h, w_down)
    x = A_x
    mod = (_silu(c) @ w_mod).reshape(c.shape[0], 6, 1, -1)
    sa, ca, ga, sb, cb, gb = (mod[:, 0].clone(), mod[:, 1].clone(), mod[:, 2].clone(), mod[:, 3].clone(), mod[:, 4].clone(), mod[:, 5].clone())
    h = _layernorm(x, axis=-1) * (1 + ca) + sa
    x = x + ga * _A_ref(h, A_k_cache, A_v_cache, A_wq, A_wo)
    h = _layernorm(x, axis=-1) * (1 + cb) + sb
    x = x + gb * _B_ref(h, B_w_gate, B_w_up, B_w_down)
    return x
```

```python
from base import *
import struct
WS=0x10000000
def fb(x): return hex(struct.unpack('<I',struct.pack('<f',x))[0])
D=4; RING=20; NR=6
def taddr(k,dst,lane,extra):
    k.e(f"""v_lshrrev_b32 v1, 5, v{lane}
    v_bfe_u32 v2, v{lane}, 2, 2
    v_lshl_add_u32 v1, v1, 3, v2
    v_lshlrev_b32 v1, 8, v1
    v_bfe_u32 v3, v{lane}, 4, 1
    v_lshl_add_u32 v1, v3, 5, v1
    v_and_b32 v3, 1, v{lane}
    v_lshl_add_u32 v1, v3, 4, v1
    v_bfe_u32 v3, v{lane}, 1, 1
    v_lshl_add_u32 v1, v3, 3, v1
    v_add_u32 v1, {extra}, v1""")
    for t in range(4): k.e(f"v_xor_b32 v3, {t}, v2\nv_lshl_add_u32 v{dst+t}, v3, 6, v1")
def drive(k,items,D=D):
    N=len(items); q2=[]
    def em(x):
        if isinstance(x,str): k.e(x)
        elif x[0]=='v': k.vmm(x[1],x[2])
        elif x[0]=='f': x[1]()
    def rds(m):
        it=items[m]
        if 'ep' in it:
            for tg in it['ep'][0]: k.nv_(tg)
            k.e("s_barrier");
            it2=items[min(m+1,N-1)]; it2.setdefault('dma',[]).extend(it['ep'][1])
        for r in it['rd']: k.lgk(r,m)
    for m in range(min(D,N)): rds(m)
    for m in range(N):
        it=items[m]
        for x in it.get('pre',[]): em(x)
        if 'vm' in it: k.nv_(it['vm'])
        k.nl(m); k.e(it['m'])
        if m+D<N: rds(m+D)
        q2+=it.get('dma',[])
        for _ in range(2):
            if q2: em(q2.pop(0))
        for x in it.get('fill',[]): em(x)
    assert not q2
def k1():
    k=K('k1_kernel',256,512,160*1024,256)
    k.srd(4,24,576*8192); k.srd(8,8,16*2048*256); k.srd(16,16,16*2048*256); k.srd(12,104,WS)
    TB=8; KA=12; TA=44; TM=44; LS=52; LC=53; O=56; HF=120; Q=120; SB=[152,184]; P=216; NM=232
    k.e(f"""s_and_b32 s20, s2, 3
    s_lshl_b32 s20, s20, 3
    s_bfe_u32 s21, s2, 0x30003
    s_add_u32 s20, s20, s21
    s_bfe_u32 s21, s2, 0x10002
    s_lshl_b32 s21, s21, 2
    s_lshr_b32 s22, s2, 6
    s_add_u32 s21, s21, s22
    v_lshrrev_b32 v1, 6, v0
    v_and_b32 v0, 63, v0
    v_readfirstlane_b32 s22, v1
    s_lshl_b32 s23, s21, 3
    s_add_u32 s23, s23, s22
    s_lshl_b32 s30, s22, 10
    s_lshl_b32 s31, s20, 8
    s_lshl_b32 s24, s22, 15
    s_add_u32 s31, s31, s24
    s_lshr_b32 s32, s20, 1
    s_lshl_b32 s32, s32, 19
    s_add_u32 s32, s32, {1536*256}
    s_add_u32 s32, s32, s30
    s_mul_i32 s33, s23, {72*512}
    s_add_u32 s33, s33, {Hb}
    s_lshl_b32 s34, s23, 18
    s_lshl_b32 s24, s20, 13
    s_add_u32 s34, s34, s24
    s_add_u32 s34, s34, {Ob}
    s_mov_b32 s40, 0x3f803f80
    s_mov_b32 s41, {fb(2.0**24)}
    s_mov_b32 s42, {fb(1.4426950408889634/128**0.5)}
    v_lshlrev_b32 v7, 4, v0
    v_lshrrev_b32 v1, 4, v0
    v_and_b32 v2, 15, v0
    v_lshlrev_b32 v3, 2, v1
    v_xor_b32 v3, v3, v2
    v_lshlrev_b32 v3, 4, v3
    v_lshl_add_u32 v4, v1, 8, v3
    v_lshl_add_u32 v6, v1, 13, v3
    s_and_b32 s24, s22, 3
    s_lshl_b32 s24, s24, 2
    v_add_u32 v3, s24, v1
    v_xor_b32 v3, v3, v2
    v_lshlrev_b32 v3, 4, v3
    v_lshl_add_u32 v5, v1, 8, v3
    s_waitcnt lgkmcnt(0)""")
    slot={('W',0):0,('W',1):2,('W',2):1,('W',3):3,('W',4):4}
    for c in range(4): slot[('K',c)]=c&1; slot[('V',c)]=2+(c&1)
    def dma(tag):
        o=[]; ty,c=tag; n=2 if tag==('W',4) else 4
        for i in range(n):
            if ty=='W': o.append(f"s_add_u32 s35, s31, {(c*128+i*32)*8192}");
            else: o.append(f"s_add_u32 s35, s32, {c*32768+i*8192}")
            o.append(f"s_add_u32 m0, s30, {slot[tag]*32768+i*8192}")
            vo,sr={'W':(6,4),'K':(5,8),'V':(4,16)}[ty]
            o.append(('v',f"buffer_load_dwordx4 v{vo}, s[{sr}:{sr+3}], s35 offen lds",tag))
        return o
    def hl(s0,n):
        o=[]
        for s in range(s0,s0+n):
            if s%4==0: o.append(f"s_add_u32 s36, s33, {s*1024}")
            r=HF+4*(s%32); o.append(('v',f"buffer_load_dwordx4 v[{r}:{r+3}], v7, s[12:15], s36 offen offset:{(s%4)*1024}",('h',s)))
        return o
    for st in range(5):
        for x in dma(('W',st))+(hl(8*st,8) if st<4 else []):
            k.e(x) if isinstance(x,str) else k.vmm(x[1],x[2])
    taddr(k,TA,0,0); taddr(k,TB,0,65536)
    k.e(f"""v_and_b32 v1, 0x13, v0
    v_and_b32 v2, 4, v0
    v_lshl_or_b32 v1, v2, 1, v1
    v_bfe_u32 v2, v0, 3, 1
    v_lshl_or_b32 v1, v2, 2, v1
    v_and_b32 v2, 15, v1
    v_lshrrev_b32 v3, 5, v0
    v_xor_b32 v2, v2, v3
    v_lshlrev_b32 v2, 4, v2
    v_lshl_add_u32 v{KA}, v1, 8, v2""")
    for s in range(1,8): k.e(f"v_xor_b32 v{KA+s}, {32*s}, v{KA}")
    items=[]
    def ring(): return RING+4*(len(items)%NR)
    def trd(base,off):
        r=ring(); return [f"ds_read_b64_tr_b16 v[{r}:{r+1}], v{base} offset:{off}",f"ds_read_b64_tr_b16 v[{r+2}:{r+3}], v{base} offset:{off+1024}"]
    def mf(d,b,c):
        r=ring(); return f"v_mfma_f32_32x32x16_bf16 v[{d}:{d+15}], v[{r}:{r+3}], v[{b}:{b+3}], {c}"
    def qconv(t):
        o=[]
        for j in range(8):
            a=O+16*t+2*j
            o+=[f"v_mul_f32 v{a}, s42, v{a}",f"v_mul_f32 v{a+1}, s42, v{a+1}",f"v_cvt_pk_bf16_f32 v{Q+8*t+j+16}, v{a}, v{a+1}"]
        return o
    Q2=Q+16
    SBx=[168,200]; Px=232; NMx=120
    eps={0:([('W',0)],[]),1:([('W',1)],dma(('K',0))+hl(32,4)),2:([('W',2)],dma(('V',0))),3:([('W',3)],dma(('K',1))),4:([('W',4),('K',0)],dma(('V',1)))}
    for st in range(5):
        order=[(s,t) for s in range(8) for t in range(4)] if st<4 else [(s,t) for t in range(4) for s in range(4)]
        for n,(s,t) in enumerate(order):
            sl=slot[('W',st)]; base=(TA if sl in(0,1,4) else TB)+t; gs=st*8+s
            a=O+16*t
            it=dict(rd=trd(base,(sl&1)*32768*(sl<4)+s*4096),m=mf(a,HF+4*(gs%32),'0' if gs==0 else f"v[{a}:{a+15}]"),vm=('h',gs),fill=[])
            if n==0: it['ep']=eps[st]
            if st==3 and n==8: it['fill']=[f"v_add_u32 v{TA+i}, 0x20000, v{TA+i}" for i in range(4)]
            if st==4 and t>=1:
                it['fill']=qconv(t-1)[6*s:6*s+6]
            items.append(it)
    def Smf(u,first_fill=None):
        c=u>>1
        for s in range(8):
            for kt in range(2):
                r=ring(); a=SBx[u&1]+16*kt
                cc=(f"v[{NMx}:{NMx+15}]" if u else '0') if s==0 else f"v[{a}:{a+15}]"
                items.append(dict(rd=[f"ds_read_b128 v[{r}:{r+3}], v{KA+s} offset:{(32*kt+64*(u&1))*256+(c&1)*32768}"],m=mf(a,Q2+4*s,cc),fill=[]))
    def PV(u):
        c=u>>1
        for ks in range(4):
            for dt in range(4):
                a=O+16*dt
                items.append(dict(rd=trd(TB+dt,(64*(u&1)+16*ks)*256+(c&1)*32768),m=mf(a,Px+4*ks,'0' if (u==0 and ks==0) else f"v[{a}:{a+15}]"),fill=[]))
    def smg(u,g):
        ks=g>>2; j=g&3; a=SBx[u&1]+16*(ks>>1)+8*(ks&1)+2*j; t=TM+2*(g%4); p=Px+g
        return [f"v_exp_f32 v{t}, v{a}",f"v_exp_f32 v{t+1}, v{a+1}"],[f"v_cvt_pk_bf16_f32 v{p}, v{t}, v{t+1}",f"v_dot2_f32_bf16 v{LC}, v{p}, s40, {'0' if g==0 else f'v{LC}'}"]
    def maxtree(b,d,t):
        o=[f"v_max3_f32 v{d}, v{b}, v{b+1}, v{b+2}",f"v_max3_f32 v{t}, v{b+3}, v{b+4}, v{b+5}"]
        for i in range(6,30,4): o+=[f"v_max3_f32 v{d}, v{d}, v{b+i}, v{b+i+1}",f"v_max3_f32 v{t}, v{t}, v{b+i+2}, v{b+i+3}"]
        o+=[f"v_max3_f32 v{d}, v{d}, v{b+30}, v{b+31}",f"v_max_f32 v{d}, v{d}, v{t}",f"v_mov_b32 v{t}, v{d}",f"v_permlane32_swap_b32 v{d}, v{t}",f"v_max_f32 v{d}, v{d}, v{t}"]
        return o
    n0=len(items); Smf(0)
    qc=qconv(3)
    for i in range(6): items[n0+2+i]['fill']=qc[4*i:4*i+4]
    pro=maxtree(SBx[0],54,55)+[f"v_sub_f32 v{NMx+i}, 0, v54" for i in range(16)]+[f"v_mov_b32 v{LS}, 0"]
    bar={1:([('K',1),('V',0)],dma(('K',2))),3:([('K',2),('V',1)],dma(('K',3))+dma(('V',2))),5:([('K',3),('V',2)],dma(('V',3))),7:([('V',3)],[])}
    for u in range(9):
        n0=len(items)
        if u>=1: PV(u-1)
        if u<=6: Smf(u+1)
        n=len(items)-n0
        if u in bar: items[n0]['ep']=bar[u]
        pre=[]
        if u==0: pre=pro
        if u>=2: pre=[f"v_cmp_nle_f32 vcc, v{LC}, s41",f"s_cbranch_vccnz L_fb{u-1}",f"L_ret{u-1}:"]
        if u>=1: pre.append(f"v_add_f32 v{LS}, v{LS}, v{LC}")
        items[n0]['pre']=pre
        if u<8:
            for g in range(16):
                e,cv=smg(u,g)
                if u==0:
                    a=SBx[0]+2*g; e=[f"v_sub_f32 v{a}, v{a}, v54",f"v_sub_f32 v{a+1}, v{a+1}, v54"]+e
                if n==32: pe=(7*g)//4; pc=max(4,pe+2)
                elif u==0: pe=min(g,14); pc=pe+1
                else: pe=min(g,14) if g>=4 else max(g-1,0); pc=min(4*(g>>2)+4,15)
                items[n0+pe]['fill']+=e
                items[n0+pc].setdefault('fill2',[]).extend(cv)
    for it in items: it['fill']=it.get('fill2',[])+it['fill']
    drive(k,items)
    k.e(f"""v_mov_b32 v54, v{LS}
    v_permlane32_swap_b32 v{LS}, v54
    v_add_f32 v{LS}, v{LS}, v54
    v_rcp_f32 v{LS}, v{LS}""")
    for dt in range(4):
        if dt%2==0: k.e(f"s_add_u32 s36, s34, {dt*2048}")
        for hf in range(2):
            d=SBx[0]+8*dt+4*hf
            for j in range(4):
                a=O+16*dt+8*hf+2*j
                k.e(f"v_mul_f32 v{a}, v{a}, v{LS}\nv_mul_f32 v{a+1}, v{a+1}, v{LS}\nv_cvt_pk_bf16_f32 v{d+j}, v{a}, v{a+1}")
            k.e(f"buffer_store_dwordx4 v[{d}:{d+3}], v7, s[12:15], s36 offen offset:{(dt%2)*2048+hf*1024}")
    k.e("s_endpgm")
    for u in range(1,8):
        k.e(f"L_fb{u}:\ns_nop 7\ns_nop 7")
        for x in maxtree(SBx[u&1],54,55): k.e(x)
        k.e(f"v_max_f32 v54, 0, v54\nv_sub_f32 v55, 0, v54\nv_exp_f32 v55, v55\ns_nop 0\nv_mul_f32 v{LS}, v{LS}, v55")
        for i in range(64): k.e(f"v_mul_f32 v{O+i}, v{O+i}, v55")
        for i in range(16): k.e(f"v_sub_f32 v{NMx+i}, v{NMx+i}, v54")
        for i in range(64): k.e(f"v_sub_f32 v{SBx[0]+i}, v{SBx[0]+i}, v54")
        for g in range(16):
            e,cv=smg(u,g)
            for x in e+cv: k.e(x)
        k.e(f"s_nop 1\ns_branch L_ret{u}")
    return k
```

```python
import re
MOD=0; Hb=0x10000; X1=0x280000; H2=0x500000; P1=0x800000; PSZ=0x240000; Ob=0x1400000; HH=0x2800000
REG=re.compile(r'\b([vs])(?:(\d+)|\[(\d+):(\d+)\])')
def regs(s):
    o=[]
    for m in REG.finditer(s):
        if m.group(2) is not None: o.append(m.group(1)+m.group(2))
        else: o+= [m.group(1)+str(i) for i in range(int(m.group(3)),int(m.group(4))+1)]
    for w in ('vcc','m0','exec'):
        if re.search(r'\b'+w+r'\b',s): o.append(w)
    return o
TRANS=('v_exp_f32','v_rcp_f32','v_rsq_f32','v_log_f32','v_sqrt_f32')
def V(a,n=1): return f"v{a}" if n==1 else f"v[{a}:{a+n-1}]"
def S(a,n=1): return f"s{a}" if n==1 else f"s[{a}:{a+n-1}]"
class K:
    def __init__(s,name,nwg,nthr,lds,nv=256):
        s.name=name; s.nwg=nwg; s.nthr=nthr; s.lds=lds; s.nv=nv; s.L=[]
        s.lg=[]; s.vm=[]
        s.e(f"s_cmp_ge_u32 s2, {nwg}"); s.e(f"s_cbranch_scc1 L_{name}_end")
    def e(s,t):
        for l in t.strip().split('\n'):
            l=l.strip()
            if l: s.L.append(l)
    def lgk(s,t,tag=None): s.e(t); s.lg.append(tag)
    def vmm(s,t,tag=None): s.e(t); s.vm.append(tag)
    def _need(s,q,tag,mx,nm):
        idx=[i for i,t in enumerate(q) if t==tag]
        if not idx: return
        n=len(q)-1-idx[-1]; n=min(n,mx)
        s.e(f"s_waitcnt {nm}({n})"); del q[:len(q)-n]
    def nl(s,tag): s._need(s.lg,tag,15,'lgkmcnt')
    def nv_(s,tag): s._need(s.vm,tag,63,'vmcnt')
    def wl0(s):
        s.e("s_waitcnt lgkmcnt(0)"); s.lg=[]
    def wv0(s):
        s.e("s_waitcnt vmcnt(0)"); s.vm=[]
    def srd(s,r,off,size):
        s.e(f"s_load_dwordx2 s[{r}:{r+1}], s[0:1], {off}\ns_mov_b32 s{r+2}, {hex(size)}\ns_mov_b32 s{r+3}, 0x00020000")
    def fin(s):
        out=[]; hist=[]
        pos=0
        for l in s.L:
            if l.endswith(':'):
                out.append(l); continue
            op=l.split()[0]; rest=l[len(op):]
            ops=[x.strip() for x in rest.split(',')]
            ismf=op.startswith('v_mfma'); isv=op.startswith('v_') and not ismf
            isvm=op.startswith('buffer_') or op.startswith('global_'); isds=op.startswith('ds_')
            st=('store' in op) or op.startswith('ds_write') or (' lds' in l)
            if op=='s_nop':
                pos+=int(ops[0])+1; out.append(l); continue
            if st: dst=[]; src=regs(rest)
            elif op.startswith('v_cmp') : dst=regs(ops[0]); src=regs(','.join(ops[1:]))
            elif 'swap' in op: dst=regs(rest); src=dst
            elif op.startswith('s_cmp') or op.startswith('s_cbranch') or op in('s_barrier','s_waitcnt','s_branch','s_endpgm','s_setprio'): dst=[]; src=regs(rest)
            else:
                dst=regs(ops[0]); src=regs(','.join(ops[1:]))
                if op in('v_fmac_f32','v_dot2c_f32_bf16') or 'dpp' in l or 'row_' in l: src=src+dst
                if op.startswith('v_cndmask') and len(ops)==3: src.append('vcc')
                if op.startswith('v_add_co') or op.startswith('v_addc'): dst=dst+['vcc']
            if 'cbranch_vcc' in op: src=['vcc']
            if ' lds' in l: src.append('m0')
            need=0
            def req(p,n):
                nonlocal need
                need=max(need,n-(pos-p-1))
            sset=set(src); dset=set(dst)
            for (p,k,r) in hist:
                if pos-p>14: continue
                if k=='valu':
                    hs=r&sset
                    if hs:
                        hv=[x for x in hs if x[0]=='v' and x!='vcc']; hsg=[x for x in hs if not(x[0]=='v' and x!='vcc')]
                        if hv:
                            if ismf: req(p,2)
                            if 'swap' in op or 'dpp' in l or 'row_' in l: req(p,2)
                            if 'readfirstlane' in op or 'readlane' in op: req(p,1)
                        if hsg:
                            if isvm: req(p,5)
                            elif isv or ismf: req(p,2)
                            else: req(p,2)
                elif k=='trans':
                    if r&sset and (isv or ismf or isvm or isds): req(p,1)
                elif k in('mf8','mf4'):
                    n=12 if k=='mf8' else 8
                    if ismf:
                        ab=set(regs(ops[1])+regs(ops[2])); c=set(regs(ops[3]))
                        if r&ab: req(p,n)
                        if (r&c and c!=r) or (r&dset and dset!=r): req(p,n)
                        elif r&dset and c!=r: req(p,n)
                    elif (r&sset or r&dset): req(p,n)
                elif k in('mc8','mc4'):
                    if (isv or isds or isvm) and r&dset: req(p,7 if k=='mc8' else 3)
                elif k=='mab':
                    if (isv or isds or isvm) and r&dset: req(p,2)
                elif k=='dot':
                    if (r&sset or r&dset) and 'dot2' not in op: req(p,3)
                elif k=='m0':
                    if 'm0' in sset and (isvm or isds): req(p,1)
                elif k=='st':
                    if (isv or ismf) and r&dset: req(p,2)
                elif k=='salu':
                    pass
            while need>0:
                n=min(need,8); out.append(f"s_nop {n-1}"); pos+=n; need-=n
            out.append(l)
            if ismf:
                p8='32x32' in op
                hist.append((pos,'mf8' if p8 else 'mf4',dset)); hist.append((pos,'mc8' if p8 else 'mc4',set(regs(ops[3]))-dset))
                hist.append((pos,'mab',set(regs(ops[1])+regs(ops[2]))))
            elif isv:
                hist.append((pos,'valu',dset))
                if 'dot2' in op: hist.append((pos,'dot',dset))
                if op in TRANS: hist.append((pos,'trans',dset))
            elif 'm0' in dset: hist.append((pos,'m0',dset))
            if st and (isvm or isds) and ' lds' not in l: hist.append((pos,'st',set(regs(ops[0] if isvm else ops[1]))))
            pos+=1
            hist=[h for h in hist if pos-h[0]<=14]
        n=s.name
        txt=f".globl {n}\n.p2align 8\n.type {n},@function\n{n}:\n"+"\n".join(out)+f"\nL_{n}_end:\ns_endpgm\n"
        kd=f""".p2align 6
.amdhsa_kernel {n}
  .amdhsa_next_free_vgpr {s.nv}
  .amdhsa_next_free_sgpr 102
  .amdhsa_accum_offset {s.nv}
  .amdhsa_group_segment_fixed_size 0
  .amdhsa_kernarg_size 112
  .amdhsa_user_sgpr_count 2
  .amdhsa_user_sgpr_kernarg_segment_ptr 1
  .amdhsa_system_sgpr_workgroup_id_x 1
.end_amdhsa_kernel
"""
        return f"; @launch kernel={n} grid=({s.nwg},1,1) block=({s.nthr},1,1) lds={s.lds}\n",txt,kd
def write(ks,path):
    a=[k.fin() for k in ks]
    o="".join(x[0] for x in a)+'.amdgcn_target "amdgcn-amd-amdhsa--gfx950"\n.text\n'+"".join(x[1] for x in a)+'.section .rodata,"a"\n'+"".join(x[2] for x in a)
    open(path,'w').write(o); return len(o)
```

```python
from base import *
WS=0x10000000
def gemm(name,woff,Ktot,act):
    KR=Ktot//4; NST=KR//128; NS=NST*4; KC=Ktot//8
    k=K(name,256,256,4*36864,256)
    k.srd(4,woff,Ktot*1152); k.srd(12,104,WS)
    k.e(f"""s_and_b32 s16, s2, 3
    s_bfe_u32 s17, s2, 0x10002
    s_lshr_b32 s18, s2, 3
    s_and_b32 s19, s18, 3
    s_lshr_b32 s18, s18, 2
    s_lshl_b32 s17, s17, 3
    s_add_u32 s17, s17, s18
    v_lshrrev_b32 v1, 6, v0
    v_and_b32 v2, 63, v0
    v_readfirstlane_b32 s20, v1
    s_lshl_b32 s21, s17, 2
    s_add_u32 s21, s21, s20
    s_mul_i32 s30, s20, 9216
    s_mul_i32 s31, s16, {KR*1152}
    s_mul_i32 s22, s19, 288
    s_add_u32 s31, s31, s22
    s_mul_i32 s32, s21, {KC*512}
    s_mul_i32 s22, s16, {KR//8*512}
    s_add_u32 s32, s32, s22
    s_add_u32 s32, s32, {act}
    s_mul_i32 s33, s21, {72*512}
    s_mul_i32 s22, s19, {18*512}
    s_add_u32 s33, s33, s22
    s_mul_i32 s22, s16, {PSZ}
    s_add_u32 s33, s33, s22
    s_add_u32 s33, s33, {P1}
    v_mul_u32_u24 v3, 576, v1
    v_add_u32 v3, v3, v2""")
    for i in range(9):
        k.e(f"""v_add_u32 v4, {64*i}, v3
        v_mul_u32_u24 v5, 3641, v4
        v_lshrrev_b32 v5, 16, v5
        v_mul_u32_u24 v6, 18, v5
        v_sub_u32 v6, v4, v6
        v_and_b32 v7, 0x73, v5
        v_and_b32 v8, 4, v5
        v_lshl_or_b32 v7, v8, 1, v7
        v_and_b32 v8, 8, v5
        v_lshrrev_b32 v8, 1, v8
        v_or_b32 v7, v7, v8
        v_mul_u32_u24 v7, 1152, v7
        v_lshl_add_u32 v{10+i}, v6, 4, v7""")
    k.e("""v_lshrrev_b32 v4, 4, v2
    v_and_b32 v5, 15, v2
    v_lshlrev_b32 v5, 4, v5
    v_lshl_add_u32 v19, v4, 9, v5
    v_lshrrev_b32 v6, 1, v4
    v_lshl_add_u32 v24, v6, 9, v5
    v_and_b32 v7, 1, v4
    v_lshl_add_u32 v24, v7, 3, v24
    v_bfe_u32 v8, v2, 2, 2
    v_lshl_add_u32 v8, v7, 2, v8
    v_lshl_add_u32 v8, v6, 4, v8
    v_mul_u32_u24 v8, 288, v8
    v_and_b32 v9, 3, v2
    v_lshl_add_u32 v20, v9, 3, v8
    v_add_u32 v21, 36864, v20
    v_add_u32 v22, 73728, v20
    v_add_u32 v23, 110592, v20
    s_waitcnt lgkmcnt(0)""")
    def dma(st):
        o=[('e',f"s_add_u32 s34, s31, {st*128*1152}")]
        for i in range(9):
            o.append(('e',f"s_add_u32 m0, s30, {(st%4)*36864+i*1024}"))
            o.append(('v',f"buffer_load_dwordx4 v{10+i}, s[4:7], s34 offen lds",('A',st)))
        return o
    def bl(j):
        o=[('e',f"s_add_u32 s35, s32, {(j//2)*4096}")]
        for u in range(2):
            f=2*j+u; r=176+4*(f%20)
            o.append(('v',f"buffer_load_dwordx4 v[{r}:{r+3}], v19, s[12:15], s35 offen offset:{(j%2)*2048+u*256}",('B',j)))
        return o
    def rd(j):
        st=j//4; Sx=j%4; o=[]
        for t in range(9):
            for e in range(2):
                r=32+36*(j%2)+4*t+2*e
                o.append(('l',f"ds_read_b64_tr_b16 v[{r}:{r+1}], v{20+st%4} offset:{e*2304+Sx*9216+t*32}",0))
        return o
    def em(x):
        if x[0]=='e': k.e(x[1])
        elif x[0]=='v': k.vmm(x[1],x[2])
        else: k.lgk(x[1],x[2])
    for x in dma(0)+bl(0)+bl(1)+bl(2)+bl(3)+dma(1)+bl(4)+bl(5)+bl(6)+bl(7)+dma(2)+bl(8): em(x)
    k.nv_(('A',0)); k.e("s_barrier")
    for x in rd(0): em(x)
    q2=[]
    for j in range(NS):
        k.wl0(); k.nv_(('B',j))
        q1=[]
        if j+1<NS:
            if (j+1)%4==0:
                s1=(j+1)//4
                k.nv_(('A',s1)); k.e("s_barrier")
                if s1+2<NST and s1+2>2: q2+=dma(s1+2)
            q1=rd(j+1)
        if j+9<NS: q2=bl(j+9)+q2
        for t in range(9):
            for u in range(2):
                a=104+36*u+4*t; A=32+36*(j%2)+4*t; B=176+4*((2*j+u)%20)
                k.e(f"v_mfma_f32_16x16x32_bf16 v[{a}:{a+3}], v[{A}:{A+3}], v[{B}:{B+3}], {'0' if j==0 else f'v[{a}:{a+3}]'}")
                if q1: em(q1.pop(0))
                if q2 and (2*t+u)>=1:
                    em(q2.pop(0))
    assert not q2
    for t in range(9):
        if t%4==0: k.e(f"s_add_u32 s36, s33, {t*1024}")
        for u in range(2):
            a=104+36*u+4*t; d=32+4*t+2*u
            k.e(f"v_cvt_pk_bf16_f32 v{d}, v{a}, v{a+1}\nv_cvt_pk_bf16_f32 v{d+1}, v{a+2}, v{a+3}")
            k.e(f"buffer_store_dwordx2 v[{d}:{d+1}], v24, s[12:15], s36 offen offset:{(t%4)*1024+u*256}")
    return k
```

```python
from base import *
from attn import drive, fb
WS=0x10000000
def k3():
    k=K('k3_kernel',256,512,6*24832,256)
    SL=24832; UP=12288+128; RING=12; NR=5; ACC=32; HF=112
    k.srd(4,48,576*9216); k.e("s_load_dwordx2 s[8:9], s[0:1], 56"); k.srd(12,104,WS)
    kk=2*0.7978845608028654*1.4426950408889634
    k.e(f"""s_and_b32 s20, s2, 7
    s_bfe_u32 s21, s2, 0x20003
    s_lshr_b32 s23, s2, 5
    v_lshrrev_b32 v1, 6, v0
    v_and_b32 v0, 63, v0
    v_readfirstlane_b32 s22, v1
    s_lshl_b32 s23, s23, 3
    s_add_u32 s23, s23, s22
    s_and_b32 s24, s22, 3
    s_lshr_b32 s25, s22, 2
    s_mul_i32 s30, s25, {UP}
    s_lshl_b32 s26, s24, 10
    s_add_u32 s30, s30, s26
    s_mul_i32 s31, s20, 1152
    s_lshl_b32 s26, s21, 5
    s_add_u32 s32, s31, s26
    s_add_u32 s32, s32, 1024
    s_lshl_b32 s26, s21, 8
    s_add_u32 s31, s31, s26
    s_mul_i32 s26, s24, {8*9216}
    s_add_u32 s31, s31, s26
    s_lshr_b32 s26, s24, 1
    s_mul_i32 s26, s26, {64*9216}
    s_add_u32 s32, s32, s26
    s_and_b32 s26, s24, 1
    s_mul_i32 s26, s26, {8*9216}
    s_add_u32 s32, s32, s26
    s_mul_i32 s33, s23, {72*512}
    s_add_u32 s33, s33, {H2}
    s_mul_i32 s34, s23, {576*512}
    s_mul_i32 s26, s20, {72*512}
    s_add_u32 s34, s34, s26
    s_add_u32 s34, s34, {HH}
    s_lshl_b32 s26, s21, 10
    s_add_u32 s37, s34, s26
    s_add_u32 s37, s37, {64*512}
    s_lshl_b32 s26, s21, 13
    s_add_u32 s34, s34, s26
    s_mov_b32 s40, {fb(-kk*0.044715)}
    v_mov_b32 v10, {fb(-kk)}
    v_lshlrev_b32 v6, 4, v0
    v_lshrrev_b32 v1, 4, v0
    v_bfe_u32 v2, v0, 1, 3
    v_and_b32 v3, 1, v0
    v_mul_u32_u24 v4, 9216, v2
    v_lshl_add_u32 v4, v3, 4, v4
    v_mul_u32_u24 v5, {16*9216}, v1
    v_add_u32 v5, v5, v4
    v_lshl_add_u32 v4, v1, 5, v4
    v_lshrrev_b32 v1, 5, v0
    v_lshlrev_b32 v1, 10, v1
    v_bfe_u32 v2, v0, 2, 2
    v_lshl_add_u32 v1, v2, 5, v1
    v_lshl_add_u32 v1, v3, 4, v1
    v_bfe_u32 v2, v0, 1, 1
    v_lshl_add_u32 v1, v2, 3, v1
    v_bfe_u32 v2, v0, 4, 1
    v_mul_u32_u24 v2, {UP}, v2
    v_add_u32 v1, v1, v2
    v_add_u32 v2, {2*SL}, v1
    v_add_u32 v3, {4*SL}, v1
    s_waitcnt lgkmcnt(0)
    s_cmp_eq_u32 s25, 0
    s_cselect_b32 s4, s4, s8
    s_cselect_b32 s5, s5, s9""")
    def dma(S):
        o=[]
        for i in range(3 if S<13 else 2):
            if S<12: o.append(f"s_add_u32 s35, s31, {(96*(S%6)+32*i)*9216+(S//6)*128}")
            else: o.append(f"s_add_u32 s35, s32, {((0 if S==12 else 320)+128*i)*9216}")
            o.append(f"s_add_u32 m0, s30, {(S%6)*SL+i*4096}")
            o.append(('v',f"buffer_load_dwordx4 v{4 if S<12 else 5}, s[4:7], s35 offen lds",('W',S)))
        return o
    for st in range(6):
        for s in range(6*st,6*st+6):
            if s%4==0 or s%6==0: k.e(f"s_add_u32 s36, s33, {(s//4)*4096}")
            r=HF+4*s; k.vmm(f"buffer_load_dwordx4 v[{r}:{r+3}], v6, s[12:15], s36 offen offset:{(s%4)*1024}",('h',s))
        for x in dma(st): k.e(x) if isinstance(x,str) else k.vmm(x[1],x[2])
    units=[(6*(j//4)+sg+(j%4),j,sg) for j in range(8) for sg in range(6)]+[(12+0.5*sg,8,sg) for sg in range(6)]
    units.sort()
    def epi(j):
        a=ACC+16*(j%5); o=[]
        for p in range(4):
            T=[(0,7),(8,9)][p&1]
            seq=[]
            for z in range(2):
                g=a+2*p+z; u=g+8; t=T[z]
                seq.append([f"v_mul_f32 v{t}, v{g}, v{g}",f"v_fma_f32 v{t}, v{t}, s40, v10",f"v_mul_f32 v{t}, v{t}, v{g}",f"v_exp_f32 v{t}, v{t}",
                  f"v_mul_f32 v{u}, v{g}, v{u}",f"v_add_f32 v{t}, 1.0, v{t}",f"v_rcp_f32 v{t}, v{t}"])
            for x,y in zip(*seq): o+=[x,y]
            o.append(('late',[f"v_mul_f32 v{a+8+2*p}, v{a+8+2*p}, v{T[0]}",f"v_mul_f32 v{a+9+2*p}, v{a+9+2*p}, v{T[1]}",f"v_cvt_pk_bf16_f32 v{a+p}, v{a+8+2*p}, v{a+9+2*p}"]))
        r=[]; pend=None; cnt=0
        for x in o:
            if isinstance(x,tuple): pend=x[1]; cnt=0; continue
            r.append(x); cnt+=1
            if pend and cnt==2: r+=pend; pend=None
        r+=pend
        if j<8: r+=[f"s_add_u32 s38, s34, {j*1024}"]
        r.append(('v',f"buffer_store_dwordx4 v[{a}:{a+3}], v6, s[12:15], {'s38' if j<8 else 's37'} offen",('st',j)))
        return r
    items=[]; lastt=-1; fifo=[]; owner={}
    for (tm,j,sg) in units:
        for s in range(6):
            gs=6*sg+s
            if j<8: S=6*(j//4)+sg; off=s*2048+(j%4)*256
            else:
                S=12 if gs<24 else 13; a_=(gs>>2)-(0 if gs<24 else 5); off=a_*2048+(gs&3)*256
            sl=S%6; off+=(sl&1)*SL; base=1+(sl>>1)
            r=RING+4*(len(items)%NR); a=ACC+16*(j%5)
            it=dict(rd=[f"ds_read_b64_tr_b16 v[{r}:{r+1}], v{base} offset:{off}",f"ds_read_b64_tr_b16 v[{r+2}:{r+3}], v{base} offset:{off+128}"],
                    m=f"v_mfma_f32_32x32x16_bf16 v[{a}:{a+15}], v[{r}:{r+3}], v[{HF+4*gs}:{HF+4*gs+3}], {'0' if gs==0 else f'v[{a}:{a+15}]'}",vm=('h',gs),fill=[])
            if int(tm)!=lastt:
                lastt=int(tm)
                if lastt<=13: it['ep']=([('W',lastt)],dma(lastt+2) if 6<=lastt+2<=13 else [])
            if gs==0 and j>=5: assert not any(o==j-5 for o,_ in fifo),j
            for _ in range(3):
                if fifo and fifo[0][0]!='w': it['fill'].append(fifo.pop(0)[1])
                elif fifo: fifo.pop(0); break
            if gs==35: fifo+=[('w',0)]*(2 if not fifo else 0)+[(j,x) for x in epi(j)]
            items.append(it)
    items[-1]['fill']+=[x for o,x in fifo if o!='w']
    drive(k,items,3)
    return k
```

```python
from base import *
WS=0x10000000
def unpack(k,d,s,n=4):
    for i in range(n):
        k.e(f"v_lshlrev_b32 v{d+2*i}, 16, v{s+i}\nv_and_b32 v{d+2*i+1}, 0xffff0000, v{s+i}")
def red3(k,r,t,first_dpp=True):
    k.e(f"v_add_f32_dpp v{r}, v{r}, v{r} row_ror:8 row_mask:0xf bank_mask:0xf")
    for sw in ('v_permlane16_swap_b32','v_permlane32_swap_b32'):
        k.e(f"v_mov_b32 v{t}, v{r}\n{sw} v{r}, v{t}\nv_add_f32 v{r}, v{r}, v{t}")
def k0a():
    k=K('k0a_kernel',54,512,8192,128)
    k.srd(4,72,1152); k.srd(8,80,576*3456*2); k.srd(12,104,WS)
    k.e("""v_lshrrev_b32 v1, 6, v0
    v_and_b32 v2, 63, v0
    v_lshrrev_b32 v3, 3, v2
    v_mul_u32_u24 v4, 72, v1
    v_add_u32 v4, v4, v3
    v_lshlrev_b32 v5, 1, v4
    v_mul_u32_u24 v6, 6912, v4
    v_and_b32 v7, 7, v0
    v_lshlrev_b32 v7, 4, v7
    v_add_u32 v6, v6, v7
    s_lshl_b32 s16, s2, 7
    s_waitcnt lgkmcnt(0)""")
    for i in range(9): k.vmm(f"buffer_load_ushort v{10+i}, v5, s[4:7], 0 offen offset:{16*i}",'c')
    for i in range(9):
        k.vmm(f"buffer_load_dwordx4 v[{20+4*i}:{23+4*i}], v6, s[8:11], s16 offen",('w',i))
        k.e(f"s_add_u32 s16, s16, {8*6912}")
    k.nv_('c')
    for i in range(9):
        c=10+i
        k.e(f"""v_lshlrev_b32 v{c}, 16, v{c}
        v_mul_f32 v60, 0xbfb8aa3b, v{c}
        v_exp_f32 v60, v60
        v_add_f32 v60, 1.0, v60
        v_rcp_f32 v60, v60
        v_mul_f32 v{c}, v{c}, v60
        v_cvt_pk_bf16_f32 v{c}, v{c}, v{c}
        v_lshlrev_b32 v{c}, 16, v{c}""")
    for j in range(8): k.e(f"v_mov_b32 v{64+j}, 0")
    for i in range(9):
        k.nv_(('w',i)); unpack(k,72,20+4*i)
        for j in range(8): k.e(f"v_fmac_f32 v{64+j}, v{72+j}, v{10+i}")
    for j in range(8): red3(k,64+j,80+j)
    k.e("""v_lshlrev_b32 v8, 8, v1
    v_lshlrev_b32 v9, 5, v2
    v_add_u32 v8, v8, v9
    v_cmp_gt_u32 vcc, 8, v2
    s_and_saveexec_b64 s[20:21], vcc
    ds_write_b128 v8, v[64:67]
    ds_write_b128 v8, v[68:71] offset:16
    s_mov_b64 exec, s[20:21]
    s_waitcnt lgkmcnt(0)
    s_barrier
    v_readfirstlane_b32 s22, v1
    s_cmp_lg_u32 s22, 0
    s_cbranch_scc1 L_k0a_kernel_end
    v_lshlrev_b32 v8, 2, v2""")
    for i in range(8): k.e(f"ds_read_b32 v{64+i}, v8 offset:{256*i}")
    k.e("s_waitcnt lgkmcnt(0)")
    for i in range(1,8): k.e(f"v_add_f32 v64, v64, v{64+i}")
    k.e(f"""v_cvt_pk_bf16_f32 v64, v64, v64
    v_lshlrev_b32 v64, 16, v64
    s_lshl_b32 s16, s2, 8
    buffer_store_dword v64, v8, s[12:15], s16 offen offset:{MOD}""")
    return k
def rk(name,mode):
    k=K(name,256,576,1024,128)
    k.srd(4,0,2048*1152); k.srd(12,104,WS)
    if mode==2: k.srd(8,88,2048*1152)
    k.e("""v_lshrrev_b32 v1, 3, v0
    v_and_b32 v2, 7, v0
    s_lshl_b32 s16, s2, 3
    v_add_u32 v3, s16, v2
    v_mul_u32_u24 v4, 1152, v3
    v_lshl_add_u32 v4, v1, 4, v4
    s_lshr_b32 s17, s2, 2
    s_mul_i32 s17, s17, 72*512
    v_and_b32 v5, 31, v3
    v_lshlrev_b32 v5, 4, v5
    v_lshl_add_u32 v5, v1, 9, v5
    v_add_u32 v5, s17, v5
    v_lshlrev_b32 v6, 5, v1
    s_waitcnt lgkmcnt(0)""")
    def ldmod(d,sec):
        k.e(f"s_movk_i32 s18, {MOD+sec*2304}")
        k.vmm(f"buffer_load_dwordx4 v[{d}:{d+3}], v6, s[12:15], s18 offen",'m')
        k.vmm(f"buffer_load_dwordx4 v[{d+4}:{d+7}], v6, s[12:15], s18 offen offset:16",'m')
    if mode==2:
        k.e(f"s_mov_b32 s19, {X1}"); k.vmm("buffer_load_dwordx4 v[8:11], v5, s[12:15], s19 offen",'x')
    else: k.vmm("buffer_load_dwordx4 v[8:11], v4, s[4:7], 0 offen",'x')
    if mode:
        for p in range(4):
            k.e(f"s_mov_b32 s{20+p}, {P1+p*PSZ}"); k.vmm(f"buffer_load_dwordx4 v[{12+4*p}:{15+4*p}], v5, s[12:15], s{20+p} offen",('p',p))
        ldmod(32,2 if mode==1 else 5)
    if mode<2:
        ldmod(40,1 if mode==0 else 4); ldmod(48,0 if mode==0 else 3)
    k.nv_('x'); unpack(k,56,8)
    if mode:
        k.nv_(('p',0)); unpack(k,64,12)
        for p in range(1,4):
            k.nv_(('p',p)); unpack(k,72,12+4*p)
            for j in range(8): k.e(f"v_add_f32 v{64+j}, v{64+j}, v{72+j}")
        k.nv_('m')
        for j in range(8): k.e(f"v_fmac_f32 v{56+j}, v{64+j}, v{32+j}")
        for j in range(4): k.e(f"v_cvt_pk_bf16_f32 v{8+j}, v{56+2*j}, v{57+2*j}")
        if mode==2:
            k.e("buffer_store_dwordx4 v[8:11], v4, s[8:11], 0 offen"); return k
        k.e(f"s_mov_b32 s19, {X1}\nbuffer_store_dwordx4 v[8:11], v5, s[12:15], s19 offen")
        unpack(k,56,8)
    k.e("v_add_f32 v80, v56, v57\nv_mul_f32 v81, v56, v56\nv_fmac_f32 v81, v57, v57")
    for j in range(2,8): k.e(f"v_add_f32 v80, v80, v{56+j}\nv_fmac_f32 v81, v{56+j}, v{56+j}")
    red3(k,80,82); red3(k,81,83)
    k.e("""v_lshrrev_b32 v84, 6, v0
    v_lshlrev_b32 v84, 3, v84
    v_lshl_add_u32 v84, v2, 7, v84
    v_lshlrev_b32 v85, 7, v2
    ds_write_b64 v84, v[80:81]
    s_waitcnt lgkmcnt(0)
    s_barrier""")
    for w in range(9): k.e(f"ds_read_b64 v[{88+2*w}:{89+2*w}], v85 offset:{8*w}")
    k.nv_('m')
    for j in range(8): k.e(f"v_add_f32 v{40+j}, 1.0, v{40+j}")
    for j in range(4): k.e(f"v_cvt_pk_bf16_f32 v{12+j}, v{40+2*j}, v{41+2*j}")
    unpack(k,40,12)
    k.e("s_waitcnt lgkmcnt(0)")
    for w in range(1,9): k.e(f"v_add_f32 v88, v88, v{88+2*w}\nv_add_f32 v89, v89, v{89+2*w}")
    k.e("""v_mul_f32 v88, 0x3ae38e39, v88
    v_mul_f32 v89, 0x3ae38e39, v89
    v_fma_f32 v89, -v88, v88, v89
    v_max_f32 v89, 0, v89
    v_add_f32 v89, 0x3727c5ac, v89
    v_rsq_f32 v89, v89""")
    for j in range(8):
        k.e(f"v_sub_f32 v{56+j}, v{56+j}, v88\nv_mul_f32 v{40+j}, v{40+j}, v89\nv_fma_f32 v{56+j}, v{56+j}, v{40+j}, v{48+j}")
    for j in range(4): k.e(f"v_cvt_pk_bf16_f32 v{16+j}, v{56+2*j}, v{57+2*j}")
    k.e(f"s_mov_b32 s19, {Hb if mode==0 else H2}\nbuffer_store_dwordx4 v[16:19], v5, s[12:15], s19 offen")
    return k
```

```python
from base import *
import small, gemm2, attn, glu
ks=([] if '1' in FUSE else ([small.k0m()] if 'm' in FUSE else [small.k0a(),small.rk('k0b_kernel',0)]))+[attn.k1(),(gemm2.gemm8 if G8 else gemm2.gemm)('k2_kernel',32,4096,Ob)]+([] if '3' in FUSE else [small.rk('r1_kernel',1)])+[glu.k3(),(gemm2.gemm8 if G8 else gemm2.gemm)('k4_kernel',64,4608,HH),small.rk('r2_kernel',2)]
print(write(ks,f'prof{EXP}.s' if PROF else 'adaLN_cond__sliding_block_cached__glu_gated_geglu__prompt.s'))
```

```python
from base import *
import struct
WS=0x10000000
def fb(x): return hex(struct.unpack('<I',struct.pack('<f',x))[0])
PACE=2; D=4; RING=20; NR=6
def taddr(k,dst,lane,extra):
    k.e(f"""v_lshrrev_b32 v1, 5, v{lane}
    v_bfe_u32 v2, v{lane}, 2, 2
    v_lshl_add_u32 v1, v1, 3, v2
    v_lshlrev_b32 v1, 8, v1
    v_bfe_u32 v3, v{lane}, 4, 1
    v_lshl_add_u32 v1, v3, 5, v1
    v_and_b32 v3, 1, v{lane}
    v_lshl_add_u32 v1, v3, 4, v1
    v_bfe_u32 v3, v{lane}, 1, 1
    v_lshl_add_u32 v1, v3, 3, v1
    v_add_u32 v1, {extra}, v1""")
    for t in range(4): k.e(f"v_xor_b32 v3, {t}, v2\nv_lshl_add_u32 v{dst+t}, v3, 6, v1")
def drive(k,items,D=D):
    N=len(items); q2=[]
    def em(x):
        if isinstance(x,str): k.e(x)
        elif x[0]=='v': k.vmm(x[1],x[2])
        elif x[0]=='f': x[1]()
    def rds(m):
        it=items[m]
        if 'ep' in it:
            for tg in it['ep'][0]: k.nv_(tg)
            k.e("s_barrier");
            it2=items[min(m+1,N-1) if m else 0]; it2.setdefault('dma',[]).extend(it['ep'][1])
            if it.get('stamp'): k.stamp()
        for r in it['rd']: k.lgk(r,m)
    for m in range(min(D,N)): rds(m)
    for m in range(N):
        it=items[m]
        for x in it.get('pre',[]): em(x)
        if 'vm' in it: k.nv_(it['vm'])
        k.nl(m); k.e(it['m'])
        if m+D<N: rds(m+D)
        q2+=it.get('dma',[])
        if m%PACE==0:
            while q2:
                x=q2.pop(0); em(x)
                if not isinstance(x,str): break
        for x in it.get('fill',[]): em(x)
    for x in q2: em(x)
def k1():
    k=K('k1_kernel',256,512,160*1024 if '1' in FUSE else 147456,256)
    k.srd(4,24,576*8192); k.srd(8,8,16*2048*256); k.srd(16,16,16*2048*256); k.srd(12,104,WS); k.srd(48,32,4096*1152); k.srd(52,0,2048*1152); k.srd(56,96,256); k.srd(72,72,1152); k.srd(96,80,576*6912)
    TB=8; KA=12; TA=44; TM=44; LS=52; LC=53; O=56; HF=120; Q=120; SB=[152,184]; P=216; NM=232
    k.e(f"""s_and_b32 s20, s2, 3
    s_lshl_b32 s20, s20, 3
    s_bfe_u32 s21, s2, 0x30003
    s_add_u32 s20, s20, s21
    s_bfe_u32 s21, s2, 0x10002
    s_lshl_b32 s21, s21, 2
    s_lshr_b32 s22, s2, 6
    s_add_u32 s21, s21, s22
    v_lshrrev_b32 v1, 6, v0
    v_and_b32 v0, 63, v0
    v_readfirstlane_b32 s22, v1
    s_lshl_b32 s23, s21, 3
    s_add_u32 s23, s23, s22
    s_lshl_b32 s30, s22, 10
    s_lshl_b32 s31, s20, 8
    s_lshl_b32 s24, s22, 15
    s_add_u32 s31, s31, s24
    s_lshr_b32 s32, s20, 1
    s_lshl_b32 s32, s32, 19
    s_add_u32 s32, s32, {1536*256}
    s_add_u32 s32, s32, s30
    s_mul_i32 s33, s23, {72*512}
    s_add_u32 s33, s33, {Hb}
    s_lshl_b32 s34, s23, 18
    s_lshl_b32 s24, s20, 13
    s_add_u32 s34, s34, s24
    s_add_u32 s34, s34, {Ob}
    s_mov_b32 s40, 0x3f803f80
    s_mov_b32 s41, {fb(2.0**24)}
    s_mov_b32 s42, {fb(1.4426950408889634/128**0.5)}
    s_bfe_u32 s25, s2, 0x20003
    v_lshlrev_b32 v7, 4, v0
    v_lshrrev_b32 v1, 4, v0
    v_and_b32 v2, 15, v0
    v_lshlrev_b32 v3, 2, v1
    v_xor_b32 v3, v3, v2
    v_lshlrev_b32 v3, 4, v3
    v_lshl_add_u32 v4, v1, 8, v3
    v_lshl_add_u32 v6, v1, 13, v3
    s_and_b32 s24, s22, 3
    s_lshl_b32 s24, s24, 2
    v_add_u32 v3, s24, v1
    v_xor_b32 v3, v3, v2
    v_lshlrev_b32 v3, 4, v3
    v_lshl_add_u32 v5, v1, 8, v3
    s_waitcnt lgkmcnt(0)""")
    for p in range(4):
        k.e(f"s_add_u32 s26, s25, {p}\ns_and_b32 s26, s26, 3\ns_lshl_b32 s27, s26, 20\ns_add_u32 s{60+p}, s31, s27\ns_lshl_b32 s27, s26, 13\ns_add_u32 s{64+p}, s33, s27")
    k.e(f"s_add_u32 s68, s33, 32768")
    slot={('W',0):0,('W',1):2,('W',2):1,('W',3):3,('W',4):4}
    for c in range(4): slot[('K',c)]=c&1; slot[('V',c)]=2+(c&1)
    def dma(tag):
        o=[]; ty,c=tag; n=2 if tag==('W',4) else 4
        for i in range(n):
            if ty=='W': o.append(f"s_add_u32 s35, s31, {(c*128+i*32)*8192}" if c==4 else f"s_add_u32 s35, s{60+c}, {i*32*8192}")
            else: o.append(f"s_add_u32 s35, s32, {c*32768+i*8192}")
            o.append(f"s_add_u32 m0, s30, {slot[tag]*32768+i*8192}")
            vo,sr={'W':(6,4),'K':(5,8),'V':(4,16)}[ty]
            o.append(('v',f"buffer_load_dwordx4 v{vo}, s[{sr}:{sr+3}], s35 offen lds",tag))
        return o
    def hl(s0,n):
        o=[]
        for s in range(s0,s0+n):
            if s%4==0: o.append(f"s_add_u32 s36, s{64+s//8}, {(s%8)*1024}")
            r=HF+4*(s%32); o.append(('v',f"buffer_load_dwordx4 v[{r}:{r+3}], v7, s[12:15], s36 offen offset:{(s%4)*1024}{' sc1' if '1' in FUSE else ''}",('h',s)))
        return o
    import small
    def emx(L):
        for x in L: k.e(x) if isinstance(x,str) else k.vmm(x[1],x[2])
    k.e("s_lshl_b32 s77, s21, 8\ns_lshl_b32 s45, s20, 3\ns_add_u32 s77, s77, s45\ns_lshl_b32 s47, s21, 4")
    def mid():
        k.e('''s_lshl_b32 s45, s22, 2
        v_lshrrev_b32 v1, 4, v0
        v_add_u32 v1, s45, v1
        v_min_u32 v1, 17, v1
        v_lshlrev_b32 v1, 13, v1
        v_and_b32 v2, 15, v0
        v_lshl_add_u32 v1, v2, 7, v1
        s_lshr_b32 s45, s2, 3
        s_mul_i32 s45, s45, 18*8192
        s_and_b32 s46, s2, 3
        s_lshl_b32 s46, s46, 11
        s_add_u32 s45, s45, s46''')
        sv=list(k.vm); small.modphase_pre(k)
        k.vmm("buffer_load_dword v87, v1, s[4:7], s45 offen",'pf')
        small.modphase(k,149504); k.vm=sv+['pf']
    if '1' in FUSE:
        small.lnphase(k,0,147456,mid,lambda:emx(dma(('W',0))+dma(('W',1))))
        k.stamp()
    else: emx(dma(('W',0)))
    emx(hl(0,8))
    taddr(k,TA,0,0); taddr(k,TB,0,65536)
    k.e(f"""v_and_b32 v1, 0x13, v0
    v_and_b32 v2, 4, v0
    v_lshl_or_b32 v1, v2, 1, v1
    v_bfe_u32 v2, v0, 3, 1
    v_lshl_or_b32 v1, v2, 2, v1
    v_and_b32 v2, 15, v1
    v_lshrrev_b32 v3, 5, v0
    v_xor_b32 v2, v2, v3
    v_lshlrev_b32 v2, 4, v2
    v_lshl_add_u32 v{KA}, v1, 8, v2""")
    for s in range(1,8): k.e(f"v_xor_b32 v{KA+s}, {32*s}, v{KA}")
    items=[]
    def ring(): return RING+4*(len(items)%NR)
    def trd(base,off):
        r=ring(); return [f"ds_read_b64_tr_b16 v[{r}:{r+1}], v{base} offset:{off}",f"ds_read_b64_tr_b16 v[{r+2}:{r+3}], v{base} offset:{off+1024}"]
    def mf(d,b,c):
        r=ring(); return f"v_mfma_f32_32x32x16_bf16 v[{d}:{d+15}], v[{r}:{r+3}], v[{b}:{b+3}], {c}"
    def qconv(t):
        o=[]
        for j in range(8):
            a=O+16*t+2*j
            o+=[f"v_mul_f32 v{a}, s42, v{a}",f"v_mul_f32 v{a+1}, s42, v{a+1}",f"v_cvt_pk_bf16_f32 v{Q+8*t+j+16}, v{a}, v{a+1}"]
        return o
    Q2=Q+16
    SBx=[168,200]; Px=232; NMx=120
    eps={0:([('W',0)],([] if '1' in FUSE else dma(('W',1)))+hl(8,8)+dma(('W',2))+hl(16,8)+dma(('W',3))+hl(24,8)),1:([('W',1)],dma(('W',4))+hl(32,4)+dma(('K',0))),2:([('W',2)],dma(('V',0))),3:([('W',3)],dma(('K',1))),4:([('W',4),('K',0)],dma(('V',1)))}
    for st in range(5):
        order=[(s,t) for s in range(8) for t in range(4)] if st<4 else [(s,t) for t in range(4) for s in range(4)]
        for n,(s,t) in enumerate(order):
            sl=slot[('W',st)]; base=(TA if sl in(0,1,4) else TB)+t; gs=st*8+s
            a=O+16*t
            it=dict(rd=trd(base,(sl&1)*32768*(sl<4)+s*4096),m=mf(a,HF+4*(gs%32),'0' if gs==0 else f"v[{a}:{a+15}]"),vm=('h',gs),fill=[])
            if n==0: it['ep']=eps[st]; it['stamp']=st in(4,)
            if st==3 and n==8: it['fill']=[f"v_add_u32 v{TA+i}, 0x20000, v{TA+i}" for i in range(4)]
            if st==4 and t>=1:
                it['fill']=qconv(t-1)[6*s:6*s+6]
            items.append(it)
    def Smf(u,first_fill=None):
        c=u>>1
        for s in range(8):
            for kt in range(2):
                r=ring(); a=SBx[u&1]+16*kt
                cc=(f"v[{NMx}:{NMx+15}]" if u else '0') if s==0 else f"v[{a}:{a+15}]"
                items.append(dict(rd=[f"ds_read_b128 v[{r}:{r+3}], v{KA+s} offset:{(32*kt+64*(u&1))*256+(c&1)*32768}"],m=mf(a,Q2+4*s,cc),fill=[]))
    def PV(u):
        c=u>>1
        for ks in range(4):
            for dt in range(4):
                a=O+16*dt
                items.append(dict(rd=trd(TB+dt,(64*(u&1)+16*ks)*256+(c&1)*32768),m=mf(a,Px+4*ks,'0' if (u==0 and ks==0) else f"v[{a}:{a+15}]"),fill=[]))
    def smg(u,g):
        ks=g>>2; j=g&3; a=SBx[u&1]+16*(ks>>1)+8*(ks&1)+2*j; t=TM+2*(g%4); p=Px+g
        return [f"v_exp_f32 v{t}, v{a}",f"v_exp_f32 v{t+1}, v{a+1}"],[f"v_cvt_pk_bf16_f32 v{p}, v{t}, v{t+1}"]+([f"v_add_f32 v{LC}, v{t}, v{t+1}"] if g==0 else [f"v_add_f32 v{LC}, v{LC}, v{t}",f"v_add_f32 v{LC}, v{LC}, v{t+1}"])
    def maxtree(b,d,t):
        o=[f"v_max3_f32 v{d}, v{b}, v{b+1}, v{b+2}",f"v_max3_f32 v{t}, v{b+3}, v{b+4}, v{b+5}"]
        for i in range(6,30,4): o+=[f"v_max3_f32 v{d}, v{d}, v{b+i}, v{b+i+1}",f"v_max3_f32 v{t}, v{t}, v{b+i+2}, v{b+i+3}"]
        o+=[f"v_max3_f32 v{d}, v{d}, v{b+30}, v{b+31}",f"v_max_f32 v{d}, v{d}, v{t}",f"v_mov_b32 v{t}, v{d}",f"v_permlane32_swap_b32 v{d}, v{t}",f"v_max_f32 v{d}, v{d}, v{t}"]
        return o
    n0=len(items); Smf(0)
    qc=qconv(3)
    for i in range(6): items[n0+2+i]['fill']=qc[4*i:4*i+4]
    pro=maxtree(SBx[0],54,55)+[f"v_sub_f32 v{NMx+i}, 0, v54" for i in range(16)]+[f"v_mov_b32 v{LS}, 0"]
    pf=["s_and_b32 s43, s2, 3","s_lshl_b32 s43, s43, 5","s_lshr_b32 s44, s2, 3","s_add_u32 s43, s43, s44","s_lshl_b32 s43, s43, 3","s_add_u32 s43, s43, s22","s_mul_i32 s43, s43, 4608"]
    pf+=["v_min_u32 v248, 35, v0","v_lshlrev_b32 v248, 7, v248",('v',f"buffer_load_dword v249, v248, s[48:51], s43 offen",'pf')]
    if 'E' in NP: pf=[]
    if TT: pf+=['v_and_b32 v250, 1, v0','v_lshlrev_b32 v250, 12, v250',('v','buffer_load_dword v251, v250, s[12:15], s34 offen','pf')]
    def pfl(sr,per):
        if 'B' in NP: return []
        o=["s_lshl_b32 s43, s2, 3","s_add_u32 s43, s43, s22",f"s_mul_i32 s43, s43, {per}"]
        for off in (0,1024,per-1024): o.append(('v',f"buffer_load_dwordx4 v[248:251], v7, s[{sr}:{sr+3}], s43 offen offset:{off}",'pf'))
        return o
    bar={1:([('K',1),('V',0)],dma(('K',2))),3:([('K',2),('V',1)],dma(('K',3))+dma(('V',2))),5:([('K',3),('V',2)],dma(('V',3))+pf),7:([('V',3)],[])}
    for u in range(9):
        n0=len(items)
        if u>=1: PV(u-1)
        if u<=6: Smf(u+1)
        n=len(items)-n0
        if u in bar: items[n0]['ep']=bar[u]; items[n0]['stamp']=u in(1,7)
        pre=[]
        if u==0: pre=pro
        if u>=2: pre=[f"v_cmp_nle_f32 vcc, v{LC}, s41",f"s_cbranch_vccnz L_fb{u-1}",f"L_ret{u-1}:"]
        if u>=1: pre.append(f"v_add_f32 v{LS}, v{LS}, v{LC}")
        items[n0]['pre']=pre
        if u<8:
            for g in range(16):
                e,cv=smg(u,g)
                if u==0:
                    a=SBx[0]+2*g; e=[f"v_sub_f32 v{a}, v{a}, v54",f"v_sub_f32 v{a+1}, v{a+1}, v54"]+e
                if n==32: pe=(7*g)//4; pc=max(4,pe+2)
                elif u==0: pe=min(g,14); pc=pe+1
                else: pe=min(g,14) if g>=4 else max(g-1,0); pc=min(4*(g>>2)+4,15)
                items[n0+pe]['fill']+=e
                items[n0+pc].setdefault('fill2',[]).extend(cv)
    for it in items: it['fill']=it.get('fill2',[])+it['fill']
    drive(k,items)
    k.e(f"""v_mov_b32 v54, v{LS}
    v_permlane32_swap_b32 v{LS}, v54
    v_add_f32 v{LS}, v{LS}, v54
    v_rcp_f32 v{LS}, v{LS}""")
    for dt in range(4):
        if dt%2==0: k.e(f"s_add_u32 s36, s34, {dt*2048}")
        for hf in range(2):
            d=SBx[0]+8*dt+4*hf
            for j in range(4):
                a=O+16*dt+8*hf+2*j
                k.e(f"v_mul_f32 v{a}, v{a}, v{LS}\nv_mul_f32 v{a+1}, v{a+1}, v{LS}\nv_cvt_pk_bf16_f32 v{d+j}, v{a}, v{a+1}")
            k.e(f"buffer_store_dwordx4 v[{d}:{d+3}], v7, s[12:15], s36 offen offset:{(dt%2)*2048+hf*1024}")
    k.done(); k.e("s_waitcnt vmcnt(0)\ns_endpgm")
    for u in range(1,8):
        k.e(f"L_fb{u}:\ns_nop 7\ns_nop 7")
        for x in maxtree(SBx[u&1],54,55): k.e(x)
        k.e(f"v_max_f32 v54, 0, v54\nv_sub_f32 v55, 0, v54\nv_exp_f32 v55, v55\ns_nop 0\nv_mul_f32 v{LS}, v{LS}, v55")
        for i in range(64): k.e(f"v_mul_f32 v{O+i}, v{O+i}, v55")
        for i in range(16): k.e(f"v_sub_f32 v{NMx+i}, v{NMx+i}, v54")
        for i in range(64): k.e(f"v_sub_f32 v{SBx[0]+i}, v{SBx[0]+i}, v54")
        for g in range(16):
            e,cv=smg(u,g)
            for x in e+cv: k.e(x)
        k.e(f"s_nop 1\ns_branch L_ret{u}")
    return k
```

```python
import re
MOD=0; Hb=0x10000; X1=0x280000; H2=0x500000; P1=0x800000; PSZ=0x240000; Ob=0x1400000; HH=0x2800000
REG=re.compile(r'\b([vs])(?:(\d+)|\[(\d+):(\d+)\])')
def regs(s):
    o=[]
    for m in REG.finditer(s):
        if m.group(2) is not None: o.append(m.group(1)+m.group(2))
        else: o+= [m.group(1)+str(i) for i in range(int(m.group(3)),int(m.group(4))+1)]
    for w in ('vcc','m0','exec'):
        if re.search(r'\b'+w+r'\b',s): o.append(w)
    return o
TRANS=('v_exp_f32','v_rcp_f32','v_rsq_f32','v_log_f32','v_sqrt_f32')
def V(a,n=1): return f"v{a}" if n==1 else f"v[{a}:{a+n-1}]"
def S(a,n=1): return f"s{a}" if n==1 else f"s[{a}:{a+n-1}]"
import os
PROF=int(os.environ.get('PROF','0')); PB=0x8000000; EXP=os.environ.get('EXP',''); NP=os.environ.get('NP','ABCG'); FUSE=os.environ.get('FUSE',''); ST=os.environ.get('ST','sc1'); TT=int(os.environ.get('TT','0'))
class K:
    cnt=0
    def __init__(s,name,nwg,nthr,lds,nv=256):
        s.name=name; s.nwg=nwg; s.nthr=nthr; s.lds=lds; s.nv=nv; s.L=[]
        s.lg=[]; s.vm=[]; s.seen=set()
        s.e(f"s_cmp_ge_u32 s2, {nwg}"); s.e(f"s_cbranch_scc1 L_{name}_end")
        s.kid=K.cnt; K.cnt+=1; s.ns=0
        if PROF: s.e("v_lshrrev_b32 v1, 6, v0\nv_readfirstlane_b32 s79, v1"); s.stamp()
    def stamp(s):
        if PROF: s.e(f"{'s_memtime' if PROF==2 else 's_memrealtime'} s[{80+2*s.ns}:{81+2*s.ns}]"); s.ns+=1; s.lg.append('st')
    def done(s):
        if PROF:
            s.e("s_waitcnt vmcnt(0)"); s.stamp(); s.e(f"s_waitcnt lgkmcnt(0)\ns_lshl_b32 s78, s2, 4\ns_add_u32 s78, s78, s79\ns_lshl_b32 s78, s78, 5\ns_add_u32 s78, s78, {PB+s.kid*256*16*32}\nv_mov_b32 v0, 0")
            for i in range(s.ns): s.e(f"v_mov_b32 v1, s{80+2*i}\nbuffer_store_dword v1, v0, s[12:15], s78 offen offset:{4*i}")
    def e(s,t):
        for l in t.strip().split('\n'):
            l=l.strip()
            if EXP and s.name[:2] in('k1','k2','k3','k4'):
                if 'L' in EXP and l.startswith('buffer_load'): continue
                if 'M' in EXP and l.startswith('v_mfma'): continue
                if 'R' in EXP and l.startswith('ds_read'): continue
                if 'X' in EXP and l.startswith('v_exp'): l=l.replace('v_exp_f32','v_mov_b32')
                if 'H' in EXP and l.startswith('ds_read'):
                    s.hc=getattr(s,'hc',0)+1
                    if s.hc>40 and (s.hc//2)%2: continue
                if 'Z' in EXP and l.startswith('ds_read'):
                    s.hc=getattr(s,'hc',0)+1
                    if s.hc>40: continue
                if 'B' in EXP and l.startswith('s_barrier'): continue
                if 'V' in EXP and l.split()[0] in('v_exp_f32','v_rcp_f32','v_fma_f32','v_mul_f32','v_dot2_f32_bf16','v_cvt_pk_bf16_f32','v_add_f32'): continue
                if l.startswith('s_cbranch_vcc'): continue
            if ST and l.startswith('buffer_store') and ' sc1' not in l and 's78' not in l: l+=' '+ST
            if l: s.L.append(l)
    def lgk(s,t,tag=None): s.e(t); s.lg.append(tag)
    def vmm(s,t,tag=None): s.e(t); s.vm.append(tag); s.seen.add(tag)
    def _need(s,q,tag,mx,nm):
        idx=[i for i,t in enumerate(q) if t==tag]
        if not idx: return
        n=len(q)-1-idx[-1]; n=min(n,mx)
        s.e(f"s_waitcnt {nm}({n})"); del q[:len(q)-n]
    def nl(s,tag): s._need(s.lg,tag,15,'lgkmcnt')
    def nv_(s,tag):
        assert tag in s.seen,(s.name,tag)
        s._need(s.vm,tag,63,'vmcnt')
    def wl0(s):
        s.e("s_waitcnt lgkmcnt(0)"); s.lg=[]
    def wv0(s):
        s.e("s_waitcnt vmcnt(0)"); s.vm=[]
    def srd(s,r,off,size):
        s.e(f"s_load_dwordx2 s[{r}:{r+1}], s[0:1], {off}\ns_mov_b32 s{r+2}, {hex(size)}\ns_mov_b32 s{r+3}, 0x00020000")
    def fin(s):
        out=[]; hist=[]
        pos=0
        for l in s.L:
            if l.endswith(':'):
                out.append(l); continue
            op=l.split()[0]; rest=l[len(op):]
            ops=[x.strip() for x in rest.split(',')]
            ismf=op.startswith('v_mfma'); isv=op.startswith('v_') and not ismf
            isvm=op.startswith('buffer_') or op.startswith('global_'); isds=op.startswith('ds_')
            st=('store' in op) or op.startswith('ds_write') or (' lds' in l)
            if op=='s_nop':
                pos+=int(ops[0])+1; out.append(l); continue
            if st: dst=[]; src=regs(rest)
            elif op.startswith('v_cmp') : dst=regs(ops[0]); src=regs(','.join(ops[1:]))
            elif 'swap' in op: dst=regs(rest); src=dst
            elif op.startswith('s_cmp') or op.startswith('s_cbranch') or op in('s_barrier','s_waitcnt','s_branch','s_endpgm','s_setprio'): dst=[]; src=regs(rest)
            else:
                dst=regs(ops[0]); src=regs(','.join(ops[1:]))
                if op in('v_fmac_f32','v_dot2c_f32_bf16') or 'dpp' in l or 'row_' in l: src=src+dst
                if op.startswith('v_cndmask') and len(ops)==3: src.append('vcc')
                if op.startswith('v_add_co') or op.startswith('v_addc'): dst=dst+['vcc']
            if 'cbranch_vcc' in op: src=['vcc']
            if ' lds' in l: src.append('m0')
            need=0
            def req(p,n):
                nonlocal need
                need=max(need,n-(pos-p-1))
            sset=set(src); dset=set(dst)
            for (p,k,r) in hist:
                if pos-p>14: continue
                if k=='valu':
                    hs=r&sset
                    if hs:
                        hv=[x for x in hs if x[0]=='v' and x!='vcc']; hsg=[x for x in hs if not(x[0]=='v' and x!='vcc')]
                        if hv:
                            if ismf: req(p,2)
                            if 'swap' in op or 'dpp' in l or 'row_' in l: req(p,2)
                            if 'readfirstlane' in op or 'readlane' in op: req(p,1)
                        if hsg:
                            if isvm: req(p,5)
                            elif isv or ismf: req(p,2)
                            else: req(p,2)
                elif k=='trans':
                    if r&sset and (isv or ismf or isvm or isds): req(p,1)
                elif k in('mf8','mf4'):
                    n=12 if k=='mf8' else 8
                    if ismf:
                        ab=set(regs(ops[1])+regs(ops[2])); c=set(regs(ops[3]))
                        if r&ab: req(p,n)
                        if (r&c and c!=r) or (r&dset and dset!=r): req(p,n)
                        elif r&dset and c!=r: req(p,n)
                    elif (r&sset or r&dset): req(p,n)
                elif k in('mc8','mc4'):
                    if (isv or isds or isvm) and r&dset: req(p,7 if k=='mc8' else 3)
                elif k=='mab':
                    if (isv or isds or isvm) and r&dset: req(p,2)
                elif k=='dot':
                    if (r&sset or r&dset) and 'dot2' not in op: req(p,3)
                elif k=='m0':
                    if 'm0' in sset and (isvm or isds): req(p,1)
                elif k=='st':
                    if (isv or ismf) and r&dset: req(p,2)
                elif k=='salu':
                    pass
            while need>0:
                n=min(need,8); out.append(f"s_nop {n-1}"); pos+=n; need-=n
            out.append(l)
            if ismf:
                p8='32x32' in op
                hist.append((pos,'mf8' if p8 else 'mf4',dset)); hist.append((pos,'mc8' if p8 else 'mc4',set(regs(ops[3]))-dset))
                hist.append((pos,'mab',set(regs(ops[1])+regs(ops[2]))))
            elif isv:
                hist.append((pos,'valu',dset))
                if 'dot2' in op: hist.append((pos,'dot',dset))
                if op in TRANS: hist.append((pos,'trans',dset))
            elif 'm0' in dset: hist.append((pos,'m0',dset))
            if st and (isvm or isds) and ' lds' not in l: hist.append((pos,'st',set(regs(ops[0] if isvm else ops[1]))))
            pos+=1
            hist=[h for h in hist if pos-h[0]<=14]
        n=s.name
        txt=f".globl {n}\n.p2align 8\n.type {n},@function\n{n}:\n"+"\n".join(out)+f"\nL_{n}_end:\ns_endpgm\n"
        kd=f""".p2align 6
.amdhsa_kernel {n}
  .amdhsa_next_free_vgpr {s.nv}
  .amdhsa_next_free_sgpr 102
  .amdhsa_accum_offset {s.nv}
  .amdhsa_group_segment_fixed_size 0
  .amdhsa_kernarg_size 112
  .amdhsa_user_sgpr_count 2
  .amdhsa_user_sgpr_kernarg_segment_ptr 1
  .amdhsa_system_sgpr_workgroup_id_x 1
.end_amdhsa_kernel
"""
        return f"; @launch kernel={n} grid=({s.nwg},1,1) block=({s.nthr},1,1) lds={s.lds}\n",txt,kd
def write(ks,path):
    a=[k.fin() for k in ks]
    o="".join(x[0] for x in a)+'.amdgcn_target "amdgcn-amd-amdhsa--gfx950"\n.text\n'+"".join(x[1] for x in a)+'.section .rodata,"a"\n'+"".join(x[2] for x in a)
    open(path,'w').write(o); return len(o)
```

```python
from base import *
WS=0x10000000
def gemm(name,woff,Ktot,act):
    KR=Ktot//4; NST=KR//64; NS=NST*2; KC=Ktot//8; ROT=4; SL=36864; BO=20480; PFJ=12
    k=K(name,256,512,4*SL,256)
    k.srd(4,woff,Ktot*1152); k.srd(12,104,WS)
    k.e(f"""s_and_b32 s16, s2, 3
    s_bfe_u32 s17, s2, 0x10002
    s_lshr_b32 s18, s2, 3
    s_and_b32 s19, s18, 3
    s_lshr_b32 s18, s18, 2
    s_lshl_b32 s17, s17, 3
    s_add_u32 s17, s17, s18
    v_lshrrev_b32 v1, 6, v0
    v_and_b32 v2, 63, v0
    v_readfirstlane_b32 s20, v1
    s_lshl_b32 s21, s17, 2
    s_cmp_lt_u32 s20, 4
    s_cbranch_scc1 L_{name}_cons
    s_and_b32 s20, s20, 3
    s_add_u32 s21, s21, s20
    s_lshl_b32 s30, s20, 10
    s_lshl_b32 s29, s20, 12
    s_mul_i32 s31, s16, {KR*1152}
    s_mul_i32 s22, s19, 288
    s_add_u32 s31, s31, s22
    s_mul_i32 s32, s21, {KC*512}
    s_mul_i32 s22, s16, {KR//8*512}
    s_add_u32 s32, s32, s22
    s_add_u32 s32, s32, {act}
    s_add_u32 s37, s31, {NST*64*1152}
    s_add_u32 s38, s32, {NST*4096}
    s_mul_i32 s34, s19, {ROT*64*1152}
    s_add_u32 s34, s34, s31
    s_mul_i32 s35, s19, {ROT*4096}
    s_add_u32 s35, s35, s32
    v_and_b32 v3, 255, v0
    v_lshlrev_b32 v19, 4, v2""")
    for i in range(5):
        k.e(f"""v_add_u32 v4, {256*i}, v3
        v_min_u32 v4, 1151, v4
        v_mul_u32_u24 v5, 3641, v4
        v_lshrrev_b32 v5, 16, v5
        v_mul_u32_u24 v6, 18, v5
        v_sub_u32 v6, v4, v6
        v_and_b32 v7, 0x73, v5
        v_and_b32 v8, 4, v5
        v_lshl_or_b32 v7, v8, 1, v7
        v_and_b32 v8, 8, v5
        v_lshrrev_b32 v8, 1, v8
        v_or_b32 v7, v7, v8
        v_mul_u32_u24 v7, 1152, v7
        v_lshl_add_u32 v{10+i}, v6, 4, v7""")
    k.e("s_waitcnt lgkmcnt(0)")
    def dma(st):
        if st: k.e(f"s_add_u32 s34, s34, {64*1152}\ns_cmp_eq_u32 s34, s37\ns_cselect_b32 s34, s31, s34\ns_add_u32 s35, s35, 4096\ns_cmp_eq_u32 s35, s38\ns_cselect_b32 s35, s32, s35")
        for i in range(5):
            k.e(f"s_add_u32 m0, s30, {(st%4)*SL+i*4096}")
            k.vmm(f"buffer_load_dwordx4 v{10+i}, s[4:7], s34 offen lds",st)
        k.e(f"s_add_u32 m0, s29, {(st%4)*SL+BO}")
        for i in range(4): k.vmm(f"buffer_load_dwordx4 v19, s[12:15], s35 offen offset:{i*1024} lds",st)
    dma(0); dma(1); k.nv_(0); k.e("s_barrier"); dma(2); dma(3)
    for s in range(1,NST):
        k.nv_(s); k.e("s_barrier")
        if s+3<NST: dma(s+3)
    k.e(f"s_waitcnt vmcnt(0)\ns_endpgm\nL_{name}_cons:")
    k.e(f"""s_add_u32 s21, s21, s20
    s_mul_i32 s33, s21, {72*512}
    s_mul_i32 s22, s19, {18*512}
    s_add_u32 s33, s33, s22
    s_mul_i32 s22, s16, {PSZ}
    s_add_u32 s33, s33, s22
    s_add_u32 s33, s33, {P1}
    v_lshrrev_b32 v4, 4, v2
    v_and_b32 v5, 15, v2
    v_lshlrev_b32 v5, 4, v5
    v_lshl_add_u32 v19, v4, 9, v5
    v_lshl_add_u32 v19, v1, 12, v19
    v_add_u32 v25, {BO}, v19
    v_add_u32 v26, {BO+2*SL}, v19
    v_lshrrev_b32 v6, 1, v4
    v_lshl_add_u32 v24, v6, 9, v5
    v_and_b32 v7, 1, v4
    v_lshl_add_u32 v24, v7, 3, v24
    v_bfe_u32 v8, v2, 2, 2
    v_lshl_add_u32 v8, v7, 2, v8
    v_lshl_add_u32 v8, v6, 4, v8
    v_mul_u32_u24 v8, 288, v8
    v_and_b32 v9, 3, v2
    v_lshl_add_u32 v20, v9, 3, v8
    v_add_u32 v21, {2*SL}, v20
    s_waitcnt lgkmcnt(0)""")
    def rd(j):
        st=j//2; Sx=j%2; o=[]; so=(st&1)*SL; hi=(st%4)>>1
        for u in range(2):
            r=176+8*(j%2)+4*u
            o.append((f"ds_read_b128 v[{r}:{r+3}], v{25+hi} offset:{so+Sx*2048+u*256}",(j,0)))
        for t in range(9):
            for e in range(2):
                r=32+36*(j%2)+4*t+2*e
                o.append((f"ds_read_b64_tr_b16 v[{r}:{r+1}], v{20+hi} offset:{so+e*2304+Sx*9216+t*32}",(j,t)))
        return o
    if woff==32:
        k.e("s_load_dwordx2 s[24:25], s[0:1], 48\ns_load_dwordx2 s[28:29], s[0:1], 56\ns_mov_b32 s26, 576*9216\ns_mov_b32 s27, 0x00020000")
        k.e('''v_mul_u32_u24 v10, 57, v2
        v_lshrrev_b32 v10, 9, v10
        v_mul_u32_u24 v11, 9, v10
        v_sub_u32 v11, v2, v11
        v_min_u32 v12, 1, v10
        v_mul_u32_u24 v10, 9216, v10
        v_lshl_add_u32 v10, v11, 7, v10
        v_add_u32 v12, 7, v12
        v_mul_u32_u24 v12, 9216, v12
        v_lshl_add_u32 v12, v11, 7, v12
        s_and_b32 s40, s2, 7
        s_mul_i32 s40, s40, 1152
        s_lshr_b32 s41, s2, 3
        s_lshl_b32 s41, s41, 1
        s_and_b32 s42, s20, 1
        s_add_u32 s41, s41, s42
        s_mul_i32 s41, s41, 9*9216
        s_add_u32 s40, s40, s41
        s_waitcnt lgkmcnt(0)
        s_cmp_lt_u32 s20, 2
        s_cselect_b32 s24, s24, s28
        s_cselect_b32 s25, s25, s29''')
    if TT: k.e("v_and_b32 v27, 3, v2\nv_mul_u32_u24 v27, 3068, v27\nbuffer_load_dword v28, v27, s[12:15], s33 offen")
    k.e("s_barrier"); k.stamp()
    for x in rd(0): k.lgk(*x)
    for j in range(NS):
        q1=[]
        if woff==32 and j==PFJ and 'G' not in NP: k.e('buffer_load_dword v13, v10, s[24:27], s40 offen\nbuffer_load_dword v14, v12, s[24:27], s40 offen')
        if j+1<NS:
            if (j+1)%2==0: k.e("s_barrier")
            q1=rd(j+1)
        for t in range(9):
            k.nl((j,t))
            for u in range(2):
                a=104+36*u+4*t; A=32+36*(j%2)+4*t; B=176+8*(j%2)+4*u
                k.e(f"v_mfma_f32_16x16x32_bf16 v[{a}:{a+3}], v[{A}:{A+3}], v[{B}:{B+3}], {'0' if j==0 else f'v[{a}:{a+3}]'}")
                for _ in range(2):
                    if q1: k.lgk(*q1.pop(0))
    k.stamp()
    for t in range(9):
        if t%4==0: k.e(f"s_add_u32 s36, s33, {t*1024}")
        for u in range(2):
            a=104+36*u+4*t; d=32+4*t+2*u
            k.e(f"v_cvt_pk_bf16_f32 v{d}, v{a}, v{a+1}\nv_cvt_pk_bf16_f32 v{d+1}, v{a+2}, v{a+3}")
            k.e(f"buffer_store_dwordx2 v[{d}:{d+1}], v24, s[12:15], s36 offen offset:{(t%4)*1024+u*256}")
    k.done(); k.e('s_waitcnt vmcnt(0)'); return k
```

```python
from base import *
from attn import drive, fb
WS=0x10000000
def k3():
    k=K('k3_kernel',256,512,6*24832+1024,256)
    SL=24832; UP=12288+128; RING=12; NR=9; ACC=48; HF=112
    k.srd(4,48,576*9216); k.e("s_load_dwordx2 s[8:9], s[0:1], 56"); k.srd(12,104,WS); k.srd(48,64,4608*1152); k.srd(52,0,2048*1152); k.srd(56,96,256)
    kk=2*0.7978845608028654*1.4426950408889634
    k.e(f"""s_and_b32 s20, s2, 7
    s_bfe_u32 s21, s2, 0x20003
    s_lshr_b32 s23, s2, 5
    v_lshrrev_b32 v1, 6, v0
    v_and_b32 v0, 63, v0
    v_readfirstlane_b32 s22, v1
    s_lshl_b32 s23, s23, 3
    s_add_u32 s23, s23, s22
    s_and_b32 s24, s22, 3
    s_lshr_b32 s25, s22, 2
    s_mul_i32 s30, s25, {UP}
    s_lshl_b32 s26, s24, 10
    s_add_u32 s30, s30, s26
    s_mul_i32 s31, s20, 1152
    s_lshl_b32 s26, s21, 5
    s_add_u32 s32, s31, s26
    s_add_u32 s32, s32, 1024
    s_lshl_b32 s26, s21, 8
    s_add_u32 s31, s31, s26
    s_mul_i32 s26, s24, {8*9216}
    s_add_u32 s31, s31, s26
    s_and_b32 s26, s24, 1
    s_mul_i32 s26, s26, {8*9216}
    s_add_u32 s32, s32, s26
    s_mul_i32 s33, s23, {72*512}
    s_add_u32 s33, s33, {H2}
    s_mul_i32 s34, s23, {576*512}
    s_mul_i32 s26, s20, {72*512}
    s_add_u32 s34, s34, s26
    s_add_u32 s34, s34, {HH}
    s_lshl_b32 s26, s21, 10
    s_add_u32 s37, s34, s26
    s_add_u32 s37, s37, {64*512}
    s_lshl_b32 s26, s21, 13
    s_add_u32 s34, s34, s26
    s_mov_b32 s40, {fb(-kk*0.044715)}
    v_lshlrev_b32 v6, 4, v0
    v_lshrrev_b32 v1, 4, v0
    v_bfe_u32 v2, v0, 1, 3
    v_and_b32 v3, 1, v0
    v_mul_u32_u24 v4, 9216, v2
    v_lshl_add_u32 v4, v3, 4, v4
    v_mul_u32_u24 v5, {16*9216}, v1
    v_add_u32 v5, v5, v4
    v_lshl_add_u32 v4, v1, 5, v4
    s_waitcnt lgkmcnt(0)
    s_cmp_eq_u32 s25, 0
    s_cselect_b32 s4, s4, s8
    s_cselect_b32 s5, s5, s9""")
    k.e("s_lshr_b32 s26, s2, 5\ns_add_u32 s26, s26, s21\ns_mul_i32 s27, s26, 43\ns_lshr_b32 s27, s27, 7\ns_mul_i32 s27, s27, 3\ns_sub_u32 s26, s26, s27\ns_lshl_b32 s27, s26, 1\ns_mul_i32 s28, s26, 3\ns_lshr_b32 s29, s24, 1\ns_add_u32 s28, s28, s29")
    for p in range(6):
        k.e(f"s_add_u32 s29, s27, {p}\ns_sub_u32 s39, s29, 6\ns_cmp_ge_u32 s29, 6\ns_cselect_b32 s29, s39, s29\ns_mul_i32 s39, s29, {96*9216}\ns_add_u32 s{60+p}, s31, s39\ns_mul_i32 s39, s29, 6144\ns_add_u32 s{66+p}, s33, s39")
    for p,a in enumerate((0,2,4,5,7)):
        k.e(f"s_add_u32 s29, s28, {a}\ns_sub_u32 s39, s29, 9\ns_cmp_ge_u32 s29, 9\ns_cselect_b32 s29, s39, s29\ns_mul_i32 s39, s29, {64*9216}\ns_add_u32 s{72+p}, s32, s39")
    def dma(S):
        o=[]
        for i in range(3 if S<13 else 2):
            if S<12: o.append(f"s_add_u32 s35, s{60+S%6}, {(32*i)*9216+(S//6)*128}")
            else: o.append(f"s_mov_b32 s35, s{72+i+3*(S-12)}")
            o.append(f"s_add_u32 m0, s30, {(S%6)*SL+i*4096}")
            o.append(('v',f"buffer_load_dwordx4 v{4 if S<12 else 5}, s[4:7], s35 offen lds",('W',S)))
        return o
    def grp(S,w=1):
        o=dma(S) if S>=2 or '3' not in FUSE else []
        if S<6:
            for s in range(6*S,6*S+6):
                if s%6 in(0,4): o.append(f"s_add_u32 s36, s{66+S}, {(s%6)*1024}")
                r=HF+4*s; o.append(('v',f"buffer_load_dwordx4 v[{r}:{r+3}], v6, s[12:15], s36 offen offset:{(s%6%4)*1024}{' sc1' if '3' in FUSE else ''}",('h',s)))
        return o
    import small
    def emx(L):
        for x in L: k.e(x) if isinstance(x,str) else k.vmm(x[1],x[2])
    k.e("s_lshr_b32 s47, s2, 5\ns_lshl_b32 s77, s47, 8\ns_and_b32 s45, s2, 31\ns_lshl_b32 s45, s45, 3\ns_add_u32 s77, s77, s45\ns_lshl_b32 s47, s47, 4")
    if '3' in FUSE:
        small.lnphase(k,1,6*SL,lambda:None,lambda:emx(dma(0)+dma(1)))
        k.stamp()
    k.e(f'''v_mov_b32 v10, {fb(-kk)}
    v_and_b32 v3, 1, v0
    v_lshrrev_b32 v1, 5, v0
    v_lshlrev_b32 v1, 10, v1
    v_bfe_u32 v2, v0, 2, 2
    v_lshl_add_u32 v1, v2, 5, v1
    v_lshl_add_u32 v1, v3, 4, v1
    v_bfe_u32 v2, v0, 1, 1
    v_lshl_add_u32 v1, v2, 3, v1
    v_bfe_u32 v2, v0, 4, 1
    v_mul_u32_u24 v2, {UP}, v2
    v_add_u32 v1, v1, v2
    v_add_u32 v2, {2*SL}, v1
    v_add_u32 v3, {4*SL}, v1
''')
    for x in grp(0): k.e(x) if isinstance(x,str) else k.vmm(x[1],x[2])
    if TT>1:
        k.e("v_and_b32 v7, 1, v0\nv_lshlrev_b32 v7, 12, v7")
        for r in (34,37): k.vmm(f"buffer_load_dword v11, v7, s[12:15], s{r} offen",'t')
    pf=["s_and_b32 s43, s2, 3","s_lshl_b32 s43, s43, 5","s_lshr_b32 s44, s2, 3","s_add_u32 s43, s43, s44","s_lshl_b32 s43, s43, 3","s_add_u32 s43, s43, s22","s_mul_i32 s43, s43, 5184","v_lshrrev_b32 v11, 4, v6","v_min_u32 v11, 40, v11","v_lshlrev_b32 v11, 7, v11",('v',"buffer_load_dword v11, v11, s[48:51], s43 offen",'pf')]
    if 'F' in NP: pf=[]
    units=[(round(sg*(1+0.2*j),3),j,sg) for j in range(4) for sg in range(6)]+[(7+sg+(j%4),j,sg) for j in range(4,8) for sg in range(6)]+[(13.5+0.5*sg,8,sg) for sg in range(6)]
    units.sort()
    last={}
    first={}
    for (tm,j,sg) in units:
        S=6*(j//4)+sg if j<8 else (12 if sg<4 else 13)
        last[S]=tm; first.setdefault(S,tm)
    nxt=[1]
    def issue(t):
        o=[]
        while nxt[0]<=13 and first[nxt[0]]<t+4 and (nxt[0]<6 or last[nxt[0]-6]<t): o+=grp(nxt[0]); nxt[0]+=1
        return o
    def epi(j):
        a=ACC+16*(j%4); o=[]
        for p in range(4):
            T=[(0,7),(8,9)][p&1]
            seq=[]
            for z in range(2):
                g=a+2*p+z; u=g+8; t=T[z]
                seq.append([f"v_mul_f32 v{t}, v{g}, v{g}",f"v_fma_f32 v{t}, v{t}, s40, v10",f"v_mul_f32 v{t}, v{t}, v{g}",f"v_exp_f32 v{t}, v{t}",
                  f"v_mul_f32 v{u}, v{g}, v{u}",f"v_add_f32 v{t}, 1.0, v{t}",f"v_rcp_f32 v{t}, v{t}"])
            for x,y in zip(*seq): o+=[x,y]
            o.append(('late',[f"v_mul_f32 v{a+8+2*p}, v{a+8+2*p}, v{T[0]}",f"v_mul_f32 v{a+9+2*p}, v{a+9+2*p}, v{T[1]}",f"v_cvt_pk_bf16_f32 v{a+p}, v{a+8+2*p}, v{a+9+2*p}"]))
        r=[]; pend=None; cnt=0
        for x in o:
            if isinstance(x,tuple): pend=x[1]; cnt=0; continue
            r.append(x); cnt+=1
            if pend and cnt==2: r+=pend; pend=None
        r+=pend
        if j<8: r+=[f"s_add_u32 s38, s34, {j*1024}"]
        r.append(('v',f"buffer_store_dwordx4 v[{a}:{a+3}], v6, s[12:15], {'s38' if j<8 else 's37'} offen",('st',j)))
        return r
    items=[]; lastt=-1; fifo=[]; owner={}
    for (tm,j,sg) in units:
        for s in range(6):
            gs=6*sg+s
            if j<8: S=6*(j//4)+sg; off=s*2048+(j%4)*256
            else:
                S=12 if gs<24 else 13; a_=(gs>>2)-(0 if gs<24 else 5); off=a_*2048+(gs&3)*256
            sl=S%6; off+=(sl&1)*SL; base=1+(sl>>1)
            r=RING+4*(len(items)%NR); a=ACC+16*(j%4)
            it=dict(rd=[f"ds_read_b64_tr_b16 v[{r}:{r+1}], v{base} offset:{off}",f"ds_read_b64_tr_b16 v[{r+2}:{r+3}], v{base} offset:{off+128}"],
                    m=f"v_mfma_f32_32x32x16_bf16 v[{a}:{a+15}], v[{r}:{r+3}], v[{HF+4*gs}:{HF+4*gs+3}], {'0' if gs==0 else f'v[{a}:{a+15}]'}",vm=('h',gs),fill=[])
            if int(tm)!=lastt:
                lastt=int(tm)
                need=[('W',S) for S in first if int(first[S])==lastt]; iss=issue(lastt)+(pf if lastt==14 else [])
                if need or iss: it['ep']=(need,iss); it['stamp']=lastt in(3,7,13)
            if gs==0 and j>=4: assert not any(o==j-4 for o,_ in fifo),j
            for _ in range(4):
                if fifo and fifo[0][0]!='w': it['fill'].append(fifo.pop(0)[1])
                elif fifo: fifo.pop(0); break
            if gs==35: fifo+=[('w',0)]*(2 if not fifo else 0)+[(j,x) for x in epi(j)]
            items.append(it)
    items[-1]['fill']+=[x for o,x in fifo if o!='w']
    print('k3 barriers',sum('ep' in i for i in items)); print(first,last); drive(k,items,7)
    k.done(); k.e('s_waitcnt vmcnt(0)')
    return k
```

```python
from base import *
WS=0x10000000
def unpack(k,d,s,n=4):
    for i in range(n):
        k.e(f"v_lshlrev_b32 v{d+2*i}, 16, v{s+i}\nv_and_b32 v{d+2*i+1}, 0xffff0000, v{s+i}")
def red3(k,r,t,first_dpp=True):
    k.e(f"v_add_f32_dpp v{r}, v{r}, v{r} row_ror:8 row_mask:0xf bank_mask:0xf")
    for sw in ('v_permlane16_swap_b32','v_permlane32_swap_b32'):
        k.e(f"v_mov_b32 v{t}, v{r}\n{sw} v{r}, v{t}\nv_add_f32 v{r}, v{r}, v{t}")
def k0a():
    k=K('k0a_kernel',54 if 'D' in NP else 320,512,8192,128)
    k.e("s_cmp_lt_u32 s2, 54\ns_cbranch_scc1 L_k0a_main\ns_cmp_lt_u32 s2, 64\ns_cbranch_scc1 L_k0a_kernel_end")
    k.srd(4,24,576*8192); k.srd(8,8,16*2048*256); k.srd(16,16,16*2048*256)
    k.e('''s_sub_u32 s20, s2, 64
    s_and_b32 s21, s20, 3
    s_lshr_b32 s20, s20, 3
    v_lshrrev_b32 v1, 7, v0
    v_and_b32 v2, 127, v0
    v_lshlrev_b32 v2, 4, v2
    v_lshl_add_u32 v2, v1, 13, v2
    s_mul_i32 s22, s20, 18*8192
    s_lshl_b32 s23, s21, 11
    s_add_u32 s22, s22, s23
    v_lshlrev_b32 v3, 4, v0
    s_lshl_b32 s23, s21, 2
    s_lshr_b32 s24, s20, 3
    s_add_u32 s23, s23, s24
    s_lshl_b32 s23, s23, 19
    s_and_b32 s24, s20, 7
    s_lshl_b32 s24, s24, 14
    s_add_u32 s23, s23, s24
    s_add_u32 s23, s23, 1536*256
    s_waitcnt lgkmcnt(0)''')
    for i in range(5):
        k.e(f"buffer_load_dwordx4 v[{4+4*i}:{7+4*i}], v2, s[4:7], s22 offen\ns_add_u32 s22, s22, {(4 if i<3 else 2)*8192}")
    k.e("s_waitcnt vmcnt(0)\ns_endpgm\nL_k0a_main:")
    k.srd(4,72,1152); k.srd(8,80,576*3456*2); k.srd(12,104,WS)
    k.e("""v_lshrrev_b32 v1, 6, v0
    v_and_b32 v2, 63, v0
    v_lshrrev_b32 v3, 3, v2
    v_mul_u32_u24 v4, 72, v1
    v_add_u32 v4, v4, v3
    v_lshlrev_b32 v5, 1, v4
    v_mul_u32_u24 v6, 6912, v4
    v_and_b32 v7, 7, v0
    v_lshlrev_b32 v7, 4, v7
    v_add_u32 v6, v6, v7
    s_lshl_b32 s16, s2, 7
    s_waitcnt lgkmcnt(0)""")
    for i in range(9): k.vmm(f"buffer_load_ushort v{10+i}, v5, s[4:7], 0 offen offset:{16*i}",'c')
    for i in range(9):
        k.vmm(f"buffer_load_dwordx4 v[{20+4*i}:{23+4*i}], v6, s[8:11], s16 offen",('w',i))
        k.e(f"s_add_u32 s16, s16, {8*6912}")
    k.nv_('c')
    for i in range(9):
        c=10+i
        k.e(f"""v_lshlrev_b32 v{c}, 16, v{c}
        v_mul_f32 v60, 0xbfb8aa3b, v{c}
        v_exp_f32 v60, v60
        v_add_f32 v60, 1.0, v60
        v_rcp_f32 v60, v60
        v_mul_f32 v{c}, v{c}, v60
        v_cvt_pk_bf16_f32 v{c}, v{c}, v{c}
        v_lshlrev_b32 v{c}, 16, v{c}""")
    for j in range(8): k.e(f"v_mov_b32 v{64+j}, 0")
    for i in range(9):
        k.nv_(('w',i)); unpack(k,72,20+4*i)
        for j in range(8): k.e(f"v_fmac_f32 v{64+j}, v{72+j}, v{10+i}")
    for j in range(8): red3(k,64+j,80+j)
    k.e("""v_lshlrev_b32 v8, 8, v1
    v_lshlrev_b32 v9, 5, v2
    v_add_u32 v8, v8, v9
    v_cmp_gt_u32 vcc, 8, v2
    s_and_saveexec_b64 s[20:21], vcc
    ds_write_b128 v8, v[64:67]
    ds_write_b128 v8, v[68:71] offset:16
    s_mov_b64 exec, s[20:21]
    s_waitcnt lgkmcnt(0)
    s_barrier
    v_readfirstlane_b32 s22, v1
    s_cmp_lg_u32 s22, 0
    s_cbranch_scc1 L_k0a_kernel_end
    v_lshlrev_b32 v8, 2, v2""")
    for i in range(8): k.e(f"ds_read_b32 v{64+i}, v8 offset:{256*i}")
    k.e("s_waitcnt lgkmcnt(0)")
    for i in range(1,8): k.e(f"v_add_f32 v64, v64, v{64+i}")
    k.e(f"""v_cvt_pk_bf16_f32 v64, v64, v64
    v_lshlrev_b32 v64, 16, v64
    s_lshl_b32 s16, s2, 8
    buffer_store_dword v64, v8, s[12:15], s16 offen offset:{MOD}""")
    k.done(); return k
def rk(name,mode):
    k=K(name,512 if mode==0 and 'A' not in NP else 256,576,1024,128)
    if mode==0:
        k.e("s_cmp_lt_u32 s2, 256\ns_cbranch_scc1 L_k0b_main")
        k.srd(8,8,16*2048*256); k.srd(16,16,16*2048*256)
        k.e('''s_sub_u32 s20, s2, 256
        s_and_b32 s21, s20, 3
        s_lshr_b32 s20, s20, 3
        v_min_u32 v3, 511, v0
        v_lshlrev_b32 v3, 4, v3
        s_lshl_b32 s23, s21, 2
        s_lshr_b32 s24, s20, 3
        s_add_u32 s23, s23, s24
        s_lshl_b32 s23, s23, 19
        s_and_b32 s24, s20, 7
        s_lshl_b32 s24, s24, 14
        s_add_u32 s23, s23, s24
        s_add_u32 s23, s23, 1536*256
        s_waitcnt lgkmcnt(0)''')
        for i in range(2):
            k.e(f"buffer_load_dwordx4 v[{24+8*i}:{27+8*i}], v3, s[8:11], s23 offen\nbuffer_load_dwordx4 v[{28+8*i}:{31+8*i}], v3, s[16:19], s23 offen\ns_add_u32 s23, s23, 8192")
        k.e("s_waitcnt vmcnt(0)\ns_endpgm\nL_k0b_main:")
    k.srd(4,0,2048*1152); k.srd(12,104,WS)
    if mode==2: k.srd(8,88,2048*1152)
    if mode==1: k.srd(24,48,576*9216); k.srd(28,56,576*9216)
    k.e("""v_lshrrev_b32 v1, 3, v0
    v_and_b32 v2, 7, v0
    s_lshl_b32 s16, s2, 3
    v_add_u32 v3, s16, v2
    v_mul_u32_u24 v4, 1152, v3
    v_lshl_add_u32 v4, v1, 4, v4
    s_lshr_b32 s17, s2, 2
    s_mul_i32 s17, s17, 72*512
    v_and_b32 v5, 31, v3
    v_lshlrev_b32 v5, 4, v5
    v_lshl_add_u32 v5, v1, 9, v5
    v_add_u32 v5, s17, v5
    v_lshlrev_b32 v6, 5, v1
    s_waitcnt lgkmcnt(0)""")
    def ldmod(d,sec):
        k.e(f"s_movk_i32 s18, {MOD+sec*2304}")
        k.vmm(f"buffer_load_dwordx4 v[{d}:{d+3}], v6, s[12:15], s18 offen",'m')
        k.vmm(f"buffer_load_dwordx4 v[{d+4}:{d+7}], v6, s[12:15], s18 offen offset:16",'m')
    if mode==2:
        k.e(f"s_mov_b32 s19, {X1}"); k.vmm("buffer_load_dwordx4 v[8:11], v5, s[12:15], s19 offen",'x')
    else: k.vmm("buffer_load_dwordx4 v[8:11], v4, s[4:7], 0 offen",'x')
    if mode:
        for p in range(4):
            k.e(f"s_mov_b32 s{20+p}, {P1+p*PSZ}"); k.vmm(f"buffer_load_dwordx4 v[{12+4*p}:{15+4*p}], v5, s[12:15], s{20+p} offen",('p',p))
        ldmod(32,2 if mode==1 else 5)
    if mode<2:
        ldmod(40,1 if mode==0 else 4); ldmod(48,0 if mode==0 else 3)
    if mode==1 and 'C' not in NP:
        k.e('''v_mul_u32_u24 v100, 911, v0
        v_lshrrev_b32 v100, 16, v100
        v_mul_u32_u24 v101, 72, v100
        v_sub_u32 v101, v0, v101
        v_mul_u32_u24 v100, 9216, v100
        v_lshl_add_u32 v100, v101, 4, v100
        s_and_b32 s32, s2, 7
        s_mul_i32 s32, s32, 1152
        s_lshr_b32 s33, s2, 3
        s_mul_i32 s33, s33, 18*9216
        s_add_u32 s32, s32, s33''')
        for i in range(3):
            k.vmm(f"buffer_load_dwordx4 v[112:115], v100, s[24:27], s32 offen",'pf'); k.vmm(f"buffer_load_dwordx4 v[108:111], v100, s[28:31], s32 offen",'pf')
            k.e(f"s_add_u32 s32, s32, {(8 if i==0 else 2)*9216}")
    k.nv_('x'); unpack(k,56,8)
    if mode:
        k.nv_(('p',0)); unpack(k,64,12)
        for p in range(1,4):
            k.nv_(('p',p)); unpack(k,72,12+4*p)
            for j in range(8): k.e(f"v_add_f32 v{64+j}, v{64+j}, v{72+j}")
        k.nv_('m')
        for j in range(8): k.e(f"v_fmac_f32 v{56+j}, v{64+j}, v{32+j}")
        for j in range(4): k.e(f"v_cvt_pk_bf16_f32 v{8+j}, v{56+2*j}, v{57+2*j}")
        if mode==2:
            k.e("buffer_store_dwordx4 v[8:11], v4, s[8:11], 0 offen"); k.done(); return k
        k.e(f"s_mov_b32 s19, {X1}\nbuffer_store_dwordx4 v[8:11], v5, s[12:15], s19 offen")
        unpack(k,56,8)
    k.e("v_add_f32 v80, v56, v57\nv_mul_f32 v81, v56, v56\nv_fmac_f32 v81, v57, v57")
    for j in range(2,8): k.e(f"v_add_f32 v80, v80, v{56+j}\nv_fmac_f32 v81, v{56+j}, v{56+j}")
    red3(k,80,82); red3(k,81,83)
    k.e("""v_lshrrev_b32 v84, 6, v0
    v_lshlrev_b32 v84, 3, v84
    v_lshl_add_u32 v84, v2, 7, v84
    v_lshlrev_b32 v85, 7, v2
    ds_write_b64 v84, v[80:81]
    s_waitcnt lgkmcnt(0)
    s_barrier""")
    for w in range(9): k.e(f"ds_read_b64 v[{88+2*w}:{89+2*w}], v85 offset:{8*w}")
    k.nv_('m')
    for j in range(8): k.e(f"v_add_f32 v{40+j}, 1.0, v{40+j}")
    for j in range(4): k.e(f"v_cvt_pk_bf16_f32 v{12+j}, v{40+2*j}, v{41+2*j}")
    unpack(k,40,12)
    k.e("s_waitcnt lgkmcnt(0)")
    for w in range(1,9): k.e(f"v_add_f32 v88, v88, v{88+2*w}\nv_add_f32 v89, v89, v{89+2*w}")
    k.e("""v_mul_f32 v88, 0x3ae38e39, v88
    v_mul_f32 v89, 0x3ae38e39, v89
    v_fma_f32 v89, -v88, v88, v89
    v_max_f32 v89, 0, v89
    v_add_f32 v89, 0x3727c5ac, v89
    v_rsq_f32 v89, v89""")
    for j in range(8):
        k.e(f"v_sub_f32 v{56+j}, v{56+j}, v88\nv_mul_f32 v{40+j}, v{40+j}, v89\nv_fma_f32 v{56+j}, v{56+j}, v{40+j}, v{48+j}")
    for j in range(4): k.e(f"v_cvt_pk_bf16_f32 v{16+j}, v{56+2*j}, v{57+2*j}")
    k.e(f"s_mov_b32 s19, {Hb if mode==0 else H2}\nbuffer_store_dwordx4 v[16:19], v5, s[12:15], s19 offen")
    k.done(); return k

def poll(k,lab,off,n):
    k.e(f"""s_cmp_lg_u32 s22, 0
    s_cbranch_scc1 L_{lab}_d
    s_mov_b32 s45, 0
    v_mov_b32 v2, s47
    L_{lab}_p:
    buffer_load_dword v3, v2, s[56:59], 0 offen offset:{off} sc1
    s_add_u32 s45, s45, 1
    s_waitcnt vmcnt(0)
    v_readfirstlane_b32 s46, v3
    s_cmp_ge_u32 s45, 0x8000
    s_cbranch_scc1 L_{lab}_d
    s_cmp_ge_u32 s46, {n}
    s_cbranch_scc1 L_{lab}_d
    s_sleep 2
    s_branch L_{lab}_p
    L_{lab}_d:
    s_barrier""")
def signal(k,lab,off):
    k.wv0()
    k.e(f"""s_barrier
    s_cmp_lg_u32 s22, 0
    s_cbranch_scc1 L_{lab}_s
    v_mov_b32 v2, s47
    v_mov_b32 v3, 1
    s_mov_b64 exec, 1
    buffer_atomic_add v3, v2, s[56:59], 0 offen offset:{off} sc1
    s_mov_b64 exec, -1
    L_{lab}_s:""")
def modphase_pre(k):
    k.e(f"""s_cmp_ge_u32 s2, 54
    s_cbranch_scc1 L_mod_pre
    v_lshrrev_b32 v3, 3, v0
    s_mul_i32 s101, s22, 72
    v_add_u32 v8, s101, v3
    v_lshlrev_b32 v9, 1, v8
    v_mul_u32_u24 v8, 6912, v8
    v_and_b32 v3, 7, v0
    v_lshl_add_u32 v8, v3, 4, v8
    s_lshl_b32 s100, s2, 7""")
    for i in range(9): k.vmm(f"buffer_load_ushort v{10+i}, v9, s[72:75], 0 offen offset:{16*i}",'c')
    for i in range(9):
        k.vmm(f"buffer_load_dwordx4 v[{20+4*i}:{23+4*i}], v8, s[96:99], s100 offen",('w',i))
        k.e(f"s_add_u32 s100, s100, {8*6912}")
    k.e('L_mod_pre:')
def modphase(k,LO):
    k.e('s_cmp_ge_u32 s2, 54\ns_cbranch_scc1 L_mod_end')
    k.nv_('c')
    for i in range(9):
        c=10+i
        k.e(f"""v_lshlrev_b32 v{c}, 16, v{c}
        v_mul_f32 v60, 0xbfb8aa3b, v{c}
        v_exp_f32 v60, v60
        v_add_f32 v60, 1.0, v60
        v_rcp_f32 v60, v60
        v_mul_f32 v{c}, v{c}, v60
        v_cvt_pk_bf16_f32 v{c}, v{c}, v{c}
        v_lshlrev_b32 v{c}, 16, v{c}""")
    for j in range(8): k.e(f"v_mov_b32 v{64+j}, 0")
    for i in range(9):
        k.nv_(('w',i)); unpack(k,72,20+4*i)
        for j in range(8): k.e(f"v_fmac_f32 v{64+j}, v{72+j}, v{10+i}")
    for j in range(8): red3(k,64+j,80+j)
    k.e(f"""s_lshl_b32 s45, s22, 8
    v_lshlrev_b32 v9, 5, v3
    v_add_u32 v8, s45, v9
    v_add_u32 v8, {LO}, v8
    ds_write_b128 v8, v[64:67]
    ds_write_b128 v8, v[68:71] offset:16
    s_waitcnt lgkmcnt(0)
    s_barrier
    s_cmp_lg_u32 s22, 0
    s_cbranch_scc1 L_mod_end
    v_lshlrev_b32 v8, 2, v0
    v_add_u32 v9, {LO}, v8""")
    for i in range(8): k.e(f"ds_read_b32 v{64+i}, v9 offset:{256*i}")
    k.e("s_waitcnt lgkmcnt(0)")
    for i in range(1,8): k.e(f"v_add_f32 v64, v64, v{64+i}")
    k.e(f"""v_cvt_pk_bf16_f32 v64, v64, v64
    v_lshlrev_b32 v64, 16, v64
    s_lshl_b32 s46, s2, 8
    buffer_store_dword v64, v8, s[12:15], s46 offen offset:{MOD} sc1
    s_waitcnt vmcnt(0)
    s_cmp_ge_u32 s2, 18
    s_cbranch_scc1 L_mod_end
    v_mov_b32 v2, 0
    v_mov_b32 v3, 1
    s_mov_b64 exec, 1
    buffer_atomic_add v3, v2, s[56:59], 0 offen sc1
    s_mov_b64 exec, -1
    L_mod_end:""")
def lnphase(k,mode,LO,mid,post):
    B=[96,168]
    k.e(f"""v_lshrrev_b32 v1, 3, v0
    s_lshl_b32 s45, s22, 3
    v_add_u32 v88, s45, v1
    v_add_u32 v89, 64, v1
    v_and_b32 v2, 7, v0
    v_add_u32 v3, s77, v2
    v_mul_u32_u24 v1, 1152, v3
    v_and_b32 v3, 31, v3
    v_lshlrev_b32 v3, 4, v3
    v_lshl_add_u32 v90, v88, 4, v1
    v_lshl_add_u32 v91, v89, 4, v1
    v_lshl_add_u32 v92, v88, 9, v3
    v_lshl_add_u32 v93, v89, 9, v3
    v_lshlrev_b32 v94, 5, v88
    v_lshlrev_b32 v95, 5, v89
    s_lshr_b32 s46, s77, 5
    s_mul_i32 s46, s46, 72*512
    v_add_u32 v92, s46, v92
    v_add_u32 v93, s46, v93
    v_lshlrev_b32 v88, 7, v2
    v_add_u32 v88, {LO}, v88
    v_add_u32 v89, s45, v88""")
    def ldmod(d,sec,fl=''):
        k.e(f"s_movk_i32 s45, {MOD+sec*2304}")
        for z in range(2):
            k.vmm(f"buffer_load_dwordx4 v[{B[z]+d}:{B[z]+d+3}], v{94+z}, s[12:15], s45 offen{fl}",'m')
            k.vmm(f"buffer_load_dwordx4 v[{B[z]+d+4}:{B[z]+d+7}], v{94+z}, s[12:15], s45 offen offset:16{fl}",'m')
    for z in range(2): k.vmm(f"buffer_load_dwordx4 v[{B[z]}:{B[z]+3}], v{90+z}, s[52:55], 0 offen",('x',z))
    if mode:
        for p in range(4):
            k.e(f"s_mov_b32 s45, {P1+p*PSZ}")
            for z in range(2): k.vmm(f"buffer_load_dwordx4 v[{B[z]+4+4*p}:{B[z]+7+4*p}], v{92+z}, s[12:15], s45 offen",('p',p,z))
        ldmod(20,2); ldmod(28,4); ldmod(36,3)
    mid()
    for z in range(2):
        b=B[z]; X=b+44
        k.nv_(('x',z)); unpack(k,X,b)
    if mode:
        for p in range(4):
            for z in range(2):
                b=B[z]
                k.nv_(('p',p,z)); unpack(k,b+(60 if p else 52),b+4+4*p)
                if p:
                    for j in range(8): k.e(f"v_add_f32 v{b+52+j}, v{b+52+j}, v{b+60+j}")
        k.nv_('m')
        k.e(f"s_mov_b32 s45, {X1}")
        for z in range(2):
            b=B[z]; X=b+44
            for j in range(8): k.e(f"v_fmac_f32 v{X+j}, v{b+52+j}, v{b+20+j}")
            for j in range(4): k.e(f"v_cvt_pk_bf16_f32 v{b+j}, v{X+2*j}, v{X+1+2*j}")
            k.vmm(f"buffer_store_dwordx4 v[{b}:{b+3}], v{92+z}, s[12:15], s45 offen",'s')
            unpack(k,X,b)
    for z in range(2):
        X=B[z]+44; a=240+2*z
        k.e(f"v_add_f32 v{a}, v{X}, v{X+1}\nv_mul_f32 v{a+1}, v{X}, v{X}\nv_fmac_f32 v{a+1}, v{X+1}, v{X+1}")
        for j in range(2,8): k.e(f"v_add_f32 v{a}, v{a}, v{X+j}\nv_fmac_f32 v{a+1}, v{X+j}, v{X+j}")
    k.e("s_cmp_eq_u32 s22, 0\ns_cselect_b32 s45, 1.0, 0\nv_fmac_f32 v240, s45, v242\nv_fmac_f32 v241, s45, v243")
    red3(k,240,242); red3(k,241,243)
    k.e("ds_write_b64 v89, v[240:241]\ns_waitcnt lgkmcnt(0)")
    if mode==0:
        k.e("s_mov_b32 s100, s47\ns_mov_b32 s47, 0"); poll(k,'pm',0,18); k.e("s_mov_b32 s47, s100"); k.vm=[]
        ldmod(28,1,' sc1'); ldmod(36,0,' sc1')
    else: k.e("s_barrier")
    for w in range(4): k.e(f"ds_read_b128 v[{8+4*w}:{11+4*w}], v88 offset:{16*w}")
    k.e("s_waitcnt lgkmcnt(0)")
    for w in range(1,8): k.e(f"v_add_f32 v8, v8, v{8+2*w}\nv_add_f32 v9, v9, v{9+2*w}")
    k.e("""v_mul_f32 v8, 0x3ae38e39, v8
    v_mul_f32 v9, 0x3ae38e39, v9
    v_fma_f32 v9, -v8, v8, v9
    v_max_f32 v9, 0, v9
    v_add_f32 v9, 0x3727c5ac, v9
    v_rsq_f32 v9, v9""")
    for z in range(2):
        for j in range(8): k.e(f"v_sub_f32 v{B[z]+44+j}, v{B[z]+44+j}, v8")
    k.nv_('m')
    k.e(f"s_mov_b32 s45, {Hb if mode==0 else H2}")
    for z in range(2):
        b=B[z]; X=b+44; c=b+28
        if z: k.e(f"s_cmp_lg_u32 s22, 0\ns_cbranch_scc1 L_ln_skip{mode}")
        for j in range(8): k.e(f"v_add_f32 v{c+j}, 1.0, v{c+j}")
        for j in range(4): k.e(f"v_cvt_pk_bf16_f32 v{b+4+j}, v{c+2*j}, v{c+1+2*j}")
        unpack(k,c,b+4)
        for j in range(8): k.e(f"v_mul_f32 v{c+j}, v{c+j}, v9\nv_fma_f32 v{X+j}, v{X+j}, v{c+j}, v{b+36+j}")
        for j in range(4): k.e(f"v_cvt_pk_bf16_f32 v{b+8+j}, v{X+2*j}, v{X+1+2*j}")
        k.e(f"buffer_store_dwordx4 v[{b+8}:{b+11}], v{92+z}, s[12:15], s45 offen sc1")
    k.e(f"L_ln_skip{mode}:")
    signal(k,f'sg{mode}',16); post(); sv=list(k.vm); poll(k,f'ph{mode}',16,32); k.vm=sv
```

```python
from base import *
WS=0x10000000
def unpack(k,d,s,n=4):
    for i in range(n):
        k.e(f"v_lshlrev_b32 v{d+2*i}, 16, v{s+i}\nv_and_b32 v{d+2*i+1}, 0xffff0000, v{s+i}")
def red3(k,r,t,first_dpp=True):
    k.e(f"v_add_f32_dpp v{r}, v{r}, v{r} row_ror:8 row_mask:0xf bank_mask:0xf")
    for sw in ('v_permlane16_swap_b32','v_permlane32_swap_b32'):
        k.e(f"v_mov_b32 v{t}, v{r}\n{sw} v{r}, v{t}\nv_add_f32 v{r}, v{r}, v{t}")
def k0a():
    k=K('k0a_kernel',54 if 'D' in NP else 320,512,8192,128)
    k.e("s_cmp_lt_u32 s2, 54\ns_cbranch_scc1 L_k0a_main\ns_cmp_lt_u32 s2, 64\ns_cbranch_scc1 L_k0a_kernel_end")
    k.srd(4,24,576*8192); k.srd(8,8,16*2048*256); k.srd(16,16,16*2048*256)
    k.e('''s_sub_u32 s20, s2, 64
    s_and_b32 s21, s20, 3
    s_lshr_b32 s20, s20, 3
    v_lshrrev_b32 v1, 7, v0
    v_and_b32 v2, 127, v0
    v_lshlrev_b32 v2, 4, v2
    v_lshl_add_u32 v2, v1, 13, v2
    s_mul_i32 s22, s20, 18*8192
    s_lshl_b32 s23, s21, 11
    s_add_u32 s22, s22, s23
    v_lshlrev_b32 v3, 4, v0
    s_lshl_b32 s23, s21, 2
    s_lshr_b32 s24, s20, 3
    s_add_u32 s23, s23, s24
    s_lshl_b32 s23, s23, 19
    s_and_b32 s24, s20, 7
    s_lshl_b32 s24, s24, 14
    s_add_u32 s23, s23, s24
    s_add_u32 s23, s23, 1536*256
    s_waitcnt lgkmcnt(0)''')
    for i in range(5):
        k.e(f"buffer_load_dwordx4 v[{4+4*i}:{7+4*i}], v2, s[4:7], s22 offen\ns_add_u32 s22, s22, {(4 if i<3 else 2)*8192}")
    k.e("s_waitcnt vmcnt(0)\ns_endpgm\nL_k0a_main:")
    k.srd(4,72,1152); k.srd(8,80,576*3456*2); k.srd(12,104,WS)
    k.e("""v_lshrrev_b32 v1, 6, v0
    v_and_b32 v2, 63, v0
    v_lshrrev_b32 v3, 3, v2
    v_mul_u32_u24 v4, 72, v1
    v_add_u32 v4, v4, v3
    v_lshlrev_b32 v5, 1, v4
    v_mul_u32_u24 v6, 6912, v4
    v_and_b32 v7, 7, v0
    v_lshlrev_b32 v7, 4, v7
    v_add_u32 v6, v6, v7
    s_lshl_b32 s16, s2, 7
    s_waitcnt lgkmcnt(0)""")
    for i in range(9): k.vmm(f"buffer_load_ushort v{10+i}, v5, s[4:7], 0 offen offset:{16*i}",'c')
    for i in range(9):
        k.vmm(f"buffer_load_dwordx4 v[{20+4*i}:{23+4*i}], v6, s[8:11], s16 offen",('w',i))
        k.e(f"s_add_u32 s16, s16, {8*6912}")
    k.nv_('c')
    for i in range(9):
        c=10+i
        k.e(f"""v_lshlrev_b32 v{c}, 16, v{c}
        v_mul_f32 v60, 0xbfb8aa3b, v{c}
        v_exp_f32 v60, v60
        v_add_f32 v60, 1.0, v60
        v_rcp_f32 v60, v60
        v_mul_f32 v{c}, v{c}, v60
        v_cvt_pk_bf16_f32 v{c}, v{c}, v{c}
        v_lshlrev_b32 v{c}, 16, v{c}""")
    for j in range(8): k.e(f"v_mov_b32 v{64+j}, 0")
    for i in range(9):
        k.nv_(('w',i)); unpack(k,72,20+4*i)
        for j in range(8): k.e(f"v_fmac_f32 v{64+j}, v{72+j}, v{10+i}")
    for j in range(8): red3(k,64+j,80+j)
    k.e("""v_lshlrev_b32 v8, 8, v1
    v_lshlrev_b32 v9, 5, v2
    v_add_u32 v8, v8, v9
    v_cmp_gt_u32 vcc, 8, v2
    s_and_saveexec_b64 s[20:21], vcc
    ds_write_b128 v8, v[64:67]
    ds_write_b128 v8, v[68:71] offset:16
    s_mov_b64 exec, s[20:21]
    s_waitcnt lgkmcnt(0)
    s_barrier
    v_readfirstlane_b32 s22, v1
    s_cmp_lg_u32 s22, 0
    s_cbranch_scc1 L_k0a_kernel_end
    v_lshlrev_b32 v8, 2, v2""")
    for i in range(8): k.e(f"ds_read_b32 v{64+i}, v8 offset:{256*i}")
    k.e("s_waitcnt lgkmcnt(0)")
    for i in range(1,8): k.e(f"v_add_f32 v64, v64, v{64+i}")
    k.e(f"""v_cvt_pk_bf16_f32 v64, v64, v64
    v_lshlrev_b32 v64, 16, v64
    s_lshl_b32 s16, s2, 8
    buffer_store_dword v64, v8, s[12:15], s16 offen offset:{MOD}""")
    k.done(); return k
def rk(name,mode):
    k=K(name,512 if mode==0 and 'A' not in NP else 256,576,1024,128)
    if mode==0:
        k.e("s_cmp_lt_u32 s2, 256\ns_cbranch_scc1 L_k0b_main")
        k.srd(8,8,16*2048*256); k.srd(16,16,16*2048*256)
        k.e('''s_sub_u32 s20, s2, 256
        s_and_b32 s21, s20, 3
        s_lshr_b32 s20, s20, 3
        v_min_u32 v3, 511, v0
        v_lshlrev_b32 v3, 4, v3
        s_lshl_b32 s23, s21, 2
        s_lshr_b32 s24, s20, 3
        s_add_u32 s23, s23, s24
        s_lshl_b32 s23, s23, 19
        s_and_b32 s24, s20, 7
        s_lshl_b32 s24, s24, 14
        s_add_u32 s23, s23, s24
        s_add_u32 s23, s23, 1536*256
        s_waitcnt lgkmcnt(0)''')
        for i in range(2):
            k.e(f"buffer_load_dwordx4 v[{24+8*i}:{27+8*i}], v3, s[8:11], s23 offen\nbuffer_load_dwordx4 v[{28+8*i}:{31+8*i}], v3, s[16:19], s23 offen\ns_add_u32 s23, s23, 8192")
        k.e("s_waitcnt vmcnt(0)\ns_endpgm\nL_k0b_main:")
    k.srd(4,0,2048*1152); k.srd(12,104,WS)
    if mode==2: k.srd(8,88,2048*1152)
    if mode==1: k.srd(24,48,576*9216); k.srd(28,56,576*9216)
    k.e("""v_lshrrev_b32 v1, 3, v0
    v_and_b32 v2, 7, v0
    s_lshl_b32 s16, s2, 3
    v_add_u32 v3, s16, v2
    v_mul_u32_u24 v4, 1152, v3
    v_lshl_add_u32 v4, v1, 4, v4
    s_lshr_b32 s17, s2, 2
    s_mul_i32 s17, s17, 72*512
    v_and_b32 v5, 31, v3
    v_lshlrev_b32 v5, 4, v5
    v_lshl_add_u32 v5, v1, 9, v5
    v_add_u32 v5, s17, v5
    v_lshlrev_b32 v6, 5, v1
    s_waitcnt lgkmcnt(0)""")
    def ldmod(d,sec):
        k.e(f"s_movk_i32 s18, {MOD+sec*2304}")
        k.vmm(f"buffer_load_dwordx4 v[{d}:{d+3}], v6, s[12:15], s18 offen",'m')
        k.vmm(f"buffer_load_dwordx4 v[{d+4}:{d+7}], v6, s[12:15], s18 offen offset:16",'m')
    if mode==2:
        k.e(f"s_mov_b32 s19, {X1}"); k.vmm("buffer_load_dwordx4 v[8:11], v5, s[12:15], s19 offen",'x')
    else: k.vmm("buffer_load_dwordx4 v[8:11], v4, s[4:7], 0 offen",'x')
    if mode:
        for p in range(4):
            k.e(f"s_mov_b32 s{20+p}, {P1+p*PSZ}"); k.vmm(f"buffer_load_dwordx4 v[{12+4*p}:{15+4*p}], v5, s[12:15], s{20+p} offen",('p',p))
        ldmod(32,2 if mode==1 else 5)
    if mode<2:
        ldmod(40,1 if mode==0 else 4); ldmod(48,0 if mode==0 else 3)
    if mode==1 and 'C' not in NP:
        k.e('''v_mul_u32_u24 v100, 911, v0
        v_lshrrev_b32 v100, 16, v100
        v_mul_u32_u24 v101, 72, v100
        v_sub_u32 v101, v0, v101
        v_mul_u32_u24 v100, 9216, v100
        v_lshl_add_u32 v100, v101, 4, v100
        s_and_b32 s32, s2, 7
        s_mul_i32 s32, s32, 1152
        s_lshr_b32 s33, s2, 3
        s_mul_i32 s33, s33, 18*9216
        s_add_u32 s32, s32, s33''')
        for i in range(3):
            k.vmm(f"buffer_load_dwordx4 v[112:115], v100, s[24:27], s32 offen",'pf'); k.vmm(f"buffer_load_dwordx4 v[108:111], v100, s[28:31], s32 offen",'pf')
            k.e(f"s_add_u32 s32, s32, {(8 if i==0 else 2)*9216}")
    if TT:
        if mode==2: k.e("v_and_b32 v116, 0xfffff000, v4"); k.vmm("buffer_load_dword v117, v116, s[8:11], 0 offen",'t')
        else:
            k.e("v_and_b32 v116, 0xfffff000, v5")
            for a in ([X1,H2] if mode else [Hb]): k.e(f"s_mov_b32 s19, {a}"); k.vmm("buffer_load_dword v117, v116, s[12:15], s19 offen",'t')
    k.nv_('x'); unpack(k,56,8)
    if mode:
        k.nv_(('p',0)); unpack(k,64,12)
        for p in range(1,4):
            k.nv_(('p',p)); unpack(k,72,12+4*p)
            for j in range(8): k.e(f"v_add_f32 v{64+j}, v{64+j}, v{72+j}")
        k.nv_('m')
        for j in range(8): k.e(f"v_fmac_f32 v{56+j}, v{64+j}, v{32+j}")
        for j in range(4): k.e(f"v_cvt_pk_bf16_f32 v{8+j}, v{56+2*j}, v{57+2*j}")
        if mode==2:
            k.e("buffer_store_dwordx4 v[8:11], v4, s[8:11], 0 offen"); k.done(); k.wv0(); return k
        k.e(f"s_mov_b32 s19, {X1}\nbuffer_store_dwordx4 v[8:11], v5, s[12:15], s19 offen")
        unpack(k,56,8)
    k.e("v_add_f32 v80, v56, v57\nv_mul_f32 v81, v56, v56\nv_fmac_f32 v81, v57, v57")
    for j in range(2,8): k.e(f"v_add_f32 v80, v80, v{56+j}\nv_fmac_f32 v81, v{56+j}, v{56+j}")
    red3(k,80,82); red3(k,81,83)
    k.e("""v_lshrrev_b32 v84, 6, v0
    v_lshlrev_b32 v84, 3, v84
    v_lshl_add_u32 v84, v2, 7, v84
    v_lshlrev_b32 v85, 7, v2
    ds_write_b64 v84, v[80:81]
    s_waitcnt lgkmcnt(0)
    s_barrier""")
    for w in range(9): k.e(f"ds_read_b64 v[{88+2*w}:{89+2*w}], v85 offset:{8*w}")
    k.nv_('m')
    for j in range(8): k.e(f"v_add_f32 v{40+j}, 1.0, v{40+j}")
    for j in range(4): k.e(f"v_cvt_pk_bf16_f32 v{12+j}, v{40+2*j}, v{41+2*j}")
    unpack(k,40,12)
    k.e("s_waitcnt lgkmcnt(0)")
    for w in range(1,9): k.e(f"v_add_f32 v88, v88, v{88+2*w}\nv_add_f32 v89, v89, v{89+2*w}")
    k.e("""v_mul_f32 v88, 0x3ae38e39, v88
    v_mul_f32 v89, 0x3ae38e39, v89
    v_fma_f32 v89, -v88, v88, v89
    v_max_f32 v89, 0, v89
    v_add_f32 v89, 0x3727c5ac, v89
    v_rsq_f32 v89, v89""")
    for j in range(8):
        k.e(f"v_sub_f32 v{56+j}, v{56+j}, v88\nv_mul_f32 v{40+j}, v{40+j}, v89\nv_fma_f32 v{56+j}, v{56+j}, v{40+j}, v{48+j}")
    for j in range(4): k.e(f"v_cvt_pk_bf16_f32 v{16+j}, v{56+2*j}, v{57+2*j}")
    k.e(f"s_mov_b32 s19, {Hb if mode==0 else H2}\nbuffer_store_dwordx4 v[16:19], v5, s[12:15], s19 offen")
    k.done(); k.wv0(); return k

def poll(k,lab,off,n):
    k.e(f"""s_cmp_lg_u32 s22, 0
    s_cbranch_scc1 L_{lab}_d
    s_mov_b32 s45, 0
    v_mov_b32 v2, s47
    L_{lab}_p:
    buffer_load_dword v3, v2, s[56:59], 0 offen offset:{off} sc1
    s_add_u32 s45, s45, 1
    s_waitcnt vmcnt(0)
    v_readfirstlane_b32 s46, v3
    s_cmp_ge_u32 s45, 0x8000
    s_cbranch_scc1 L_{lab}_d
    s_cmp_ge_u32 s46, {n}
    s_cbranch_scc1 L_{lab}_d
    s_sleep 2
    s_branch L_{lab}_p
    L_{lab}_d:
    s_barrier""")
def signal(k,lab,off):
    k.wv0()
    k.e(f"""s_barrier
    s_cmp_lg_u32 s22, 0
    s_cbranch_scc1 L_{lab}_s
    v_mov_b32 v2, s47
    v_mov_b32 v3, 1
    s_mov_b64 exec, 1
    buffer_atomic_add v3, v2, s[56:59], 0 offen offset:{off} sc1
    s_mov_b64 exec, -1
    L_{lab}_s:""")
def modphase_pre(k):
    k.e(f"""s_cmp_ge_u32 s2, 54
    s_cbranch_scc1 L_mod_pre
    v_lshrrev_b32 v3, 3, v0
    s_mul_i32 s101, s22, 72
    v_add_u32 v8, s101, v3
    v_lshlrev_b32 v9, 1, v8
    v_mul_u32_u24 v8, 6912, v8
    v_and_b32 v3, 7, v0
    v_lshl_add_u32 v8, v3, 4, v8
    s_lshl_b32 s100, s2, 7""")
    for i in range(9): k.vmm(f"buffer_load_ushort v{10+i}, v9, s[72:75], 0 offen offset:{16*i}",'c')
    for i in range(9):
        k.vmm(f"buffer_load_dwordx4 v[{20+4*i}:{23+4*i}], v8, s[96:99], s100 offen",('w',i))
        k.e(f"s_add_u32 s100, s100, {8*6912}")
    k.e('L_mod_pre:')
def modphase(k,LO):
    k.e('s_cmp_ge_u32 s2, 54\ns_cbranch_scc1 L_mod_end')
    k.nv_('c')
    for i in range(9):
        c=10+i
        k.e(f"""v_lshlrev_b32 v{c}, 16, v{c}
        v_mul_f32 v60, 0xbfb8aa3b, v{c}
        v_exp_f32 v60, v60
        v_add_f32 v60, 1.0, v60
        v_rcp_f32 v60, v60
        v_mul_f32 v{c}, v{c}, v60
        v_cvt_pk_bf16_f32 v{c}, v{c}, v{c}
        v_lshlrev_b32 v{c}, 16, v{c}""")
    for j in range(8): k.e(f"v_mov_b32 v{64+j}, 0")
    for i in range(9):
        k.nv_(('w',i)); unpack(k,72,20+4*i)
        for j in range(8): k.e(f"v_fmac_f32 v{64+j}, v{72+j}, v{10+i}")
    for j in range(8): red3(k,64+j,80+j)
    k.e(f"""s_lshl_b32 s45, s22, 8
    v_lshlrev_b32 v9, 5, v3
    v_add_u32 v8, s45, v9
    v_add_u32 v8, {LO}, v8
    ds_write_b128 v8, v[64:67]
    ds_write_b128 v8, v[68:71] offset:16
    s_waitcnt lgkmcnt(0)
    s_barrier
    s_cmp_lg_u32 s22, 0
    s_cbranch_scc1 L_mod_end
    v_lshlrev_b32 v8, 2, v0
    v_add_u32 v9, {LO}, v8""")
    for i in range(8): k.e(f"ds_read_b32 v{64+i}, v9 offset:{256*i}")
    k.e("s_waitcnt lgkmcnt(0)")
    for i in range(1,8): k.e(f"v_add_f32 v64, v64, v{64+i}")
    k.e(f"""v_cvt_pk_bf16_f32 v64, v64, v64
    v_lshlrev_b32 v64, 16, v64
    s_lshl_b32 s46, s2, 8
    buffer_store_dword v64, v8, s[12:15], s46 offen offset:{MOD} sc1
    s_waitcnt vmcnt(0)
    s_cmp_ge_u32 s2, 18
    s_cbranch_scc1 L_mod_end
    v_mov_b32 v2, 0
    v_mov_b32 v3, 1
    s_mov_b64 exec, 1
    buffer_atomic_add v3, v2, s[56:59], 0 offen sc1
    s_mov_b64 exec, -1
    L_mod_end:""")
def lnphase(k,mode,LO,mid,post):
    B=[96,168]
    k.e(f"""v_lshrrev_b32 v1, 3, v0
    s_lshl_b32 s45, s22, 3
    v_add_u32 v88, s45, v1
    v_add_u32 v89, 64, v1
    v_and_b32 v2, 7, v0
    v_add_u32 v3, s77, v2
    v_mul_u32_u24 v1, 1152, v3
    v_and_b32 v3, 31, v3
    v_lshlrev_b32 v3, 4, v3
    v_lshl_add_u32 v90, v88, 4, v1
    v_lshl_add_u32 v91, v89, 4, v1
    v_lshl_add_u32 v92, v88, 9, v3
    v_lshl_add_u32 v93, v89, 9, v3
    v_lshlrev_b32 v94, 5, v88
    v_lshlrev_b32 v95, 5, v89
    s_lshr_b32 s46, s77, 5
    s_mul_i32 s46, s46, 72*512
    v_add_u32 v92, s46, v92
    v_add_u32 v93, s46, v93
    v_lshlrev_b32 v88, 7, v2
    v_add_u32 v88, {LO}, v88
    v_add_u32 v89, s45, v88""")
    def ldmod(d,sec,fl=''):
        k.e(f"s_movk_i32 s45, {MOD+sec*2304}")
        for z in range(2):
            k.vmm(f"buffer_load_dwordx4 v[{B[z]+d}:{B[z]+d+3}], v{94+z}, s[12:15], s45 offen{fl}",'m')
            k.vmm(f"buffer_load_dwordx4 v[{B[z]+d+4}:{B[z]+d+7}], v{94+z}, s[12:15], s45 offen offset:16{fl}",'m')
    for z in range(2): k.vmm(f"buffer_load_dwordx4 v[{B[z]}:{B[z]+3}], v{90+z}, s[52:55], 0 offen",('x',z))
    if mode:
        for p in range(4):
            k.e(f"s_mov_b32 s45, {P1+p*PSZ}")
            for z in range(2): k.vmm(f"buffer_load_dwordx4 v[{B[z]+4+4*p}:{B[z]+7+4*p}], v{92+z}, s[12:15], s45 offen",('p',p,z))
        ldmod(20,2); ldmod(28,4); ldmod(36,3)
    mid()
    for z in range(2):
        b=B[z]; X=b+44
        k.nv_(('x',z)); unpack(k,X,b)
    if mode:
        for p in range(4):
            for z in range(2):
                b=B[z]
                k.nv_(('p',p,z)); unpack(k,b+(60 if p else 52),b+4+4*p)
                if p:
                    for j in range(8): k.e(f"v_add_f32 v{b+52+j}, v{b+52+j}, v{b+60+j}")
        k.nv_('m')
        k.e(f"s_mov_b32 s45, {X1}")
        for z in range(2):
            b=B[z]; X=b+44
            for j in range(8): k.e(f"v_fmac_f32 v{X+j}, v{b+52+j}, v{b+20+j}")
            for j in range(4): k.e(f"v_cvt_pk_bf16_f32 v{b+j}, v{X+2*j}, v{X+1+2*j}")
            k.vmm(f"buffer_store_dwordx4 v[{b}:{b+3}], v{92+z}, s[12:15], s45 offen",'s')
            unpack(k,X,b)
    for z in range(2):
        X=B[z]+44; a=240+2*z
        k.e(f"v_add_f32 v{a}, v{X}, v{X+1}\nv_mul_f32 v{a+1}, v{X}, v{X}\nv_fmac_f32 v{a+1}, v{X+1}, v{X+1}")
        for j in range(2,8): k.e(f"v_add_f32 v{a}, v{a}, v{X+j}\nv_fmac_f32 v{a+1}, v{X+j}, v{X+j}")
    k.e("s_cmp_eq_u32 s22, 0\ns_cselect_b32 s45, 1.0, 0\nv_fmac_f32 v240, s45, v242\nv_fmac_f32 v241, s45, v243")
    red3(k,240,242); red3(k,241,243)
    k.e("ds_write_b64 v89, v[240:241]\ns_waitcnt lgkmcnt(0)")
    if mode==0:
        k.e("s_mov_b32 s100, s47\ns_mov_b32 s47, 0"); poll(k,'pm',0,18); k.e("s_mov_b32 s47, s100"); k.vm=[]
        ldmod(28,1,' sc1'); ldmod(36,0,' sc1')
    else: k.e("s_barrier")
    for w in range(4): k.e(f"ds_read_b128 v[{8+4*w}:{11+4*w}], v88 offset:{16*w}")
    k.e("s_waitcnt lgkmcnt(0)")
    for w in range(1,8): k.e(f"v_add_f32 v8, v8, v{8+2*w}\nv_add_f32 v9, v9, v{9+2*w}")
    k.e("""v_mul_f32 v8, 0x3ae38e39, v8
    v_mul_f32 v9, 0x3ae38e39, v9
    v_fma_f32 v9, -v8, v8, v9
    v_max_f32 v9, 0, v9
    v_add_f32 v9, 0x3727c5ac, v9
    v_rsq_f32 v9, v9""")
    for z in range(2):
        for j in range(8): k.e(f"v_sub_f32 v{B[z]+44+j}, v{B[z]+44+j}, v8")
    k.nv_('m')
    k.e(f"s_mov_b32 s45, {Hb if mode==0 else H2}")
    for z in range(2):
        b=B[z]; X=b+44; c=b+28
        if z: k.e(f"s_cmp_lg_u32 s22, 0\ns_cbranch_scc1 L_ln_skip{mode}")
        for j in range(8): k.e(f"v_add_f32 v{c+j}, 1.0, v{c+j}")
        for j in range(4): k.e(f"v_cvt_pk_bf16_f32 v{b+4+j}, v{c+2*j}, v{c+1+2*j}")
        unpack(k,c,b+4)
        for j in range(8): k.e(f"v_mul_f32 v{c+j}, v{c+j}, v9\nv_fma_f32 v{X+j}, v{X+j}, v{c+j}, v{b+36+j}")
        for j in range(4): k.e(f"v_cvt_pk_bf16_f32 v{b+8+j}, v{X+2*j}, v{X+1+2*j}")
        k.e(f"buffer_store_dwordx4 v[{b+8}:{b+11}], v{92+z}, s[12:15], s45 offen sc1")
    k.e(f"L_ln_skip{mode}:")
    signal(k,f'sg{mode}',16); post(); sv=list(k.vm); poll(k,f'ph{mode}',16,32); k.vm=sv

def k0m():
    k=K('k0m_kernel',256,576,8192,128)
    k.srd(4,0,2048*1152); k.srd(12,104,WS); k.srd(8,80,576*6912); k.srd(16,72,1152); k.srd(24,24,576*8192); k.srd(56,96,256)
    k.e("""v_lshrrev_b32 v1, 3, v0
    v_and_b32 v2, 7, v0
    s_lshl_b32 s20, s2, 3
    v_add_u32 v3, s20, v2
    v_mul_u32_u24 v4, 1152, v3
    v_lshl_add_u32 v4, v1, 4, v4
    s_lshr_b32 s21, s2, 2
    s_mul_i32 s21, s21, 72*512
    v_and_b32 v5, 31, v3
    v_lshlrev_b32 v5, 4, v5
    v_lshl_add_u32 v5, v1, 9, v5
    v_add_u32 v5, s21, v5
    v_lshlrev_b32 v6, 5, v1
    v_lshrrev_b32 v7, 6, v0
    v_readfirstlane_b32 s22, v7
    v_bfe_u32 v8, v0, 3, 3
    v_lshl_add_u32 v8, v7, 6, v8
    v_lshlrev_b32 v9, 1, v8
    v_mul_u32_u24 v8, 6912, v8
    v_lshl_add_u32 v8, v2, 4, v8
    s_lshl_b32 s23, s2, 7
    v_lshrrev_b32 v96, 4, v0
    v_min_u32 v96, 17, v96
    v_lshlrev_b32 v96, 13, v96
    v_and_b32 v97, 15, v0
    v_lshl_add_u32 v96, v97, 7, v96
    s_lshr_b32 s28, s2, 3
    s_mul_i32 s28, s28, 18*8192
    s_and_b32 s29, s2, 3
    s_lshl_b32 s29, s29, 11
    s_add_u32 s28, s28, s29
    s_mov_b32 s47, 0
    s_waitcnt lgkmcnt(0)
    s_cmp_ge_u32 s2, 54
    s_cbranch_scc1 L_k0m_a""")
    for i in range(8): k.e(f"buffer_load_ushort v{10+i}, v9, s[16:19], 0 offen offset:{16*i}")
    for i in range(8): k.e(f"buffer_load_dwordx4 v[{20+4*i}:{23+4*i}], v8, s[8:11], s23 offen\ns_add_u32 s23, s23, {8*6912}")
    k.e("L_k0m_a:")
    k.e("buffer_load_dwordx4 v[100:103], v4, s[4:7], 0 offen")
    if TT: k.e(f"""v_and_b32 v97, 0xfffff000, v5
    s_mov_b32 s19, {Hb}
    v_mov_b32 v95, 0x8000
    buffer_load_dword v99, v95, s[12:15], 0 offen
    v_mov_b32 v94, 252
    buffer_load_dword v99, v94, s[56:59], 0 offen sc1
    buffer_load_dword v99, v97, s[12:15], s19 offen""")
    k.e("s_cmp_ge_u32 s2, 54\ns_cbranch_scc1 L_k0m_b\ns_waitcnt vmcnt(%d)"%(9+3*(TT>0)))
    for i in range(8):
        c=10+i
        k.e(f"""v_lshlrev_b32 v{c}, 16, v{c}
        v_mul_f32 v88, 0xbfb8aa3b, v{c}
        v_exp_f32 v88, v88
        v_add_f32 v88, 1.0, v88
        v_rcp_f32 v88, v88
        v_mul_f32 v{c}, v{c}, v88
        v_cvt_pk_bf16_f32 v{c}, v{c}, v{c}
        v_lshlrev_b32 v{c}, 16, v{c}""")
    for j in range(8): k.e(f"v_mov_b32 v{64+j}, 0")
    for i in range(8):
        k.e(f"s_waitcnt vmcnt({8-i+3*(TT>0)})"); unpack(k,72,20+4*i)
        for j in range(8): k.e(f"v_fmac_f32 v{64+j}, v{72+j}, v{10+i}")
    if PROF: k.e("s_memrealtime s[92:93]")
    for j in range(8): red3(k,64+j,80+j)
    k.e("""v_lshlrev_b32 v8, 8, v7
    v_lshl_add_u32 v8, v2, 5, v8
    ds_write_b128 v8, v[64:67] offset:1024
    ds_write_b128 v8, v[68:71] offset:1040
    s_waitcnt lgkmcnt(0)
    s_barrier
    s_cmp_lg_u32 s22, 0
    s_cbranch_scc1 L_k0m_b
    v_lshlrev_b32 v8, 2, v0""")
    for i in range(9): k.e(f"ds_read_b32 v{64+i}, v8 offset:{1024+256*i}")
    k.e("s_waitcnt lgkmcnt(0)")
    for i in range(1,9): k.e(f"v_add_f32 v64, v64, v{64+i}")
    k.e(f"""v_cvt_pk_bf16_f32 v64, v64, v64
    v_lshlrev_b32 v64, 16, v64
    s_lshl_b32 s23, s2, 8
    buffer_store_dword v64, v8, s[12:15], s23 offen offset:{MOD} sc1
    s_cmp_ge_u32 s2, 18
    s_cbranch_scc1 L_k0m_b
    s_waitcnt vmcnt(0)
    {'s_memrealtime s[94:95]' if PROF else ''}
    s_lshl_b32 s23, s2, 2
    v_mov_b32 v8, s23
    v_mov_b32 v9, 1
    s_mov_b64 exec, 1
    buffer_store_dword v9, v8, s[56:59], 0 offen sc1
    s_mov_b64 exec, -1
    L_k0m_b:
    buffer_load_dword v98, v96, s[24:27], s28 offen
    s_waitcnt vmcnt({1+3*(TT>0)})""")
    unpack(k,56,100)
    k.e("v_add_f32 v80, v56, v57\nv_mul_f32 v81, v56, v56\nv_fmac_f32 v81, v57, v57")
    for j in range(2,8): k.e(f"v_add_f32 v80, v80, v{56+j}\nv_fmac_f32 v81, v{56+j}, v{56+j}")
    red3(k,80,82); red3(k,81,83)
    k.e("""v_lshlrev_b32 v84, 3, v7
    v_lshl_add_u32 v84, v2, 7, v84
    v_lshlrev_b32 v85, 7, v2
    v_lshlrev_b32 v86, 3, v0
    ds_write_b64 v84, v[80:81]
    s_waitcnt lgkmcnt(0)""")
    k.stamp()
    k.e('''s_cmp_lg_u32 s22, 0
    s_cbranch_scc1 L_k0m_d
    s_mov_b32 s45, 0
    v_min_u32 v2, 17, v0
    v_lshlrev_b32 v2, 2, v2
    s_cmp_lt_u32 s2, 54
    s_cbranch_scc1 L_k0m_p
    s_sleep '''+os.environ.get('SL0','80')+'''
    L_k0m_p:
    buffer_load_dword v3, v2, s[56:59], 0 offen sc1
    s_add_u32 s45, s45, 1
    s_waitcnt vmcnt(0)
    v_cmp_ne_u32 vcc, 0, v3
    s_cmp_ge_u32 s45, 0x8000
    s_cbranch_scc1 L_k0m_d
    s_cmp_eq_u64 vcc, -1
    s_cbranch_scc1 L_k0m_d
    s_sleep '''+os.environ.get('SL1','8')+'''
    s_branch L_k0m_p
    L_k0m_d:
    s_barrier'''); k.stamp()
    k.e(f"buffer_load_dwordx2 v[8:9], v86, s[12:15], 0 offen offset:{MOD} sc1")
    for w in range(9): k.e(f"ds_read_b64 v[{100+2*w}:{101+2*w}], v85 offset:{8*w}")
    k.e("s_waitcnt lgkmcnt(0)")
    for w in range(1,9): k.e(f"v_add_f32 v100, v100, v{100+2*w}\nv_add_f32 v101, v101, v{101+2*w}")
    k.e("""v_mul_f32 v88, 0x3ae38e39, v100
    v_mul_f32 v89, 0x3ae38e39, v101
    v_fma_f32 v89, -v88, v88, v89
    v_max_f32 v89, 0, v89
    v_add_f32 v89, 0x3727c5ac, v89
    v_rsq_f32 v89, v89""")
    for j in range(8): k.e(f"v_sub_f32 v{56+j}, v{56+j}, v88")
    k.e("""s_waitcnt vmcnt(0)
    ds_write_b64 v86, v[8:9] offset:3328
    s_waitcnt lgkmcnt(0)
    s_barrier
    ds_read_b128 v[40:43], v6 offset:5632
    ds_read_b128 v[44:47], v6 offset:5648
    ds_read_b128 v[48:51], v6 offset:3328
    ds_read_b128 v[52:55], v6 offset:3344
    s_waitcnt lgkmcnt(2)""")
    for j in range(8): k.e(f"v_add_f32 v{40+j}, 1.0, v{40+j}")
    for j in range(4): k.e(f"v_cvt_pk_bf16_f32 v{12+j}, v{40+2*j}, v{41+2*j}")
    unpack(k,40,12)
    k.e("s_waitcnt lgkmcnt(0)")
    for j in range(8): k.e(f"v_mul_f32 v{40+j}, v{40+j}, v89\nv_fma_f32 v{56+j}, v{56+j}, v{40+j}, v{48+j}")
    for j in range(4): k.e(f"v_cvt_pk_bf16_f32 v{16+j}, v{56+2*j}, v{57+2*j}")
    k.e(f"s_mov_b32 s19, {Hb}\nbuffer_store_dwordx4 v[16:19], v5, s[12:15], s19 offen")
    k.done()
    k.e('s_waitcnt vmcnt(0)')
    if PROF: k.e("v_mov_b32 v1, s92\nbuffer_store_dword v1, v0, s[12:15], s78 offen offset:24\nv_mov_b32 v1, s94\nbuffer_store_dword v1, v0, s[12:15], s78 offen offset:28")
    return k
```

```python
import re, os
MOD=0; Hb=0x10000; X1=0x280000; H2=0x500000; P1=0x800000; P2=0x800000; PSZ=0x240000; Ob=0x1400000; HH=int(os.environ.get('HHA','0x2800000'),16)
REG=re.compile(r'\b([vs])(?:(\d+)|\[(\d+):(\d+)\])')
def regs(s):
    o=[]
    for m in REG.finditer(s):
        if m.group(2) is not None: o.append(m.group(1)+m.group(2))
        else: o+= [m.group(1)+str(i) for i in range(int(m.group(3)),int(m.group(4))+1)]
    for w in ('vcc','m0','exec'):
        if re.search(r'\b'+w+r'\b',s): o.append(w)
    return o
TRANS=('v_exp_f32','v_rcp_f32','v_rsq_f32','v_log_f32','v_sqrt_f32')
def V(a,n=1): return f"v{a}" if n==1 else f"v[{a}:{a+n-1}]"
def S(a,n=1): return f"s{a}" if n==1 else f"s[{a}:{a+n-1}]"
import os
PROF=int(os.environ.get('PROF','0')); PB=0x8000000; EXP=os.environ.get('EXP',''); NP=os.environ.get('NP','ABCGY'); FUSE=os.environ.get('FUSE',''); ST=os.environ.get('ST','sc1'); G8=int(os.environ.get('G8','0')); TT=int(os.environ.get('TT','0'))
class K:
    cnt=0
    def __init__(s,name,nwg,nthr,lds,nv=256):
        s.name=name; s.nwg=nwg; s.nthr=nthr; s.lds=lds; s.nv=nv; s.L=[]
        s.lg=[]; s.vm=[]; s.seen=set()
        s.e(f"s_cmp_ge_u32 s2, {nwg}"); s.e(f"s_cbranch_scc1 L_{name}_end")
        s.kid=K.cnt; K.cnt+=1; s.ns=0
        if PROF: s.e("v_lshrrev_b32 v1, 6, v0\nv_readfirstlane_b32 s79, v1"); s.stamp()
    def stamp(s):
        if PROF: s.e(f"{'s_memtime' if PROF==2 else 's_memrealtime'} s[{80+2*s.ns}:{81+2*s.ns}]"); s.ns+=1; s.lg.append('st')
    def done(s):
        if PROF:
            s.e("s_waitcnt vmcnt(0)"); s.stamp(); s.e(f"s_waitcnt lgkmcnt(0)\ns_lshl_b32 s78, s2, 4\ns_add_u32 s78, s78, s79\ns_lshl_b32 s78, s78, 5\ns_add_u32 s78, s78, {PB+s.kid*256*16*32}\nv_mov_b32 v0, 0")
            for i in range(s.ns): s.e(f"v_mov_b32 v1, s{80+2*i}\nbuffer_store_dword v1, v0, s[12:15], s78 offen offset:{4*i}")
    def e(s,t):
        for l in t.strip().split('\n'):
            l=l.strip()
            if EXP and s.name[:2] in('k1','k2','k3','k4'):
                if 'L' in EXP and l.startswith('buffer_load'): continue
                if 'M' in EXP and l.startswith('v_mfma'): continue
                if 'R' in EXP and l.startswith('ds_read'): continue
                if 'X' in EXP and l.startswith('v_exp'): l=l.replace('v_exp_f32','v_mov_b32')
                if 'H' in EXP and l.startswith('ds_read'):
                    s.hc=getattr(s,'hc',0)+1
                    if s.hc>40 and (s.hc//2)%2: continue
                if 'Z' in EXP and l.startswith('ds_read'):
                    s.hc=getattr(s,'hc',0)+1
                    if s.hc>40: continue
                if 'B' in EXP and l.startswith('s_barrier'): continue
                if 'V' in EXP and l.split()[0] in('v_exp_f32','v_rcp_f32','v_fma_f32','v_mul_f32','v_dot2_f32_bf16','v_cvt_pk_bf16_f32','v_add_f32'): continue
                if l.startswith('s_cbranch_vcc'): continue
            if ST and l.startswith('buffer_store') and ' sc1' not in l and 's78' not in l and s.name[:2] not in os.environ.get('NOSC','').split(','): l+=' '+ST
            if l: s.L.append(l)
    def lgk(s,t,tag=None): s.e(t); s.lg.append(tag)
    def vmm(s,t,tag=None): s.e(t); s.vm.append(tag); s.seen.add(tag)
    def _need(s,q,tag,mx,nm):
        idx=[i for i,t in enumerate(q) if t==tag]
        if not idx: return
        n=len(q)-1-idx[-1]; n=min(n,mx)
        s.e(f"s_waitcnt {nm}({n})"); del q[:len(q)-n]
    def nl(s,tag): s._need(s.lg,tag,15,'lgkmcnt')
    def nv_(s,tag):
        assert tag in s.seen,(s.name,tag)
        s._need(s.vm,tag,63,'vmcnt')
    def wl0(s):
        s.e("s_waitcnt lgkmcnt(0)"); s.lg=[]
    def wv0(s):
        s.e("s_waitcnt vmcnt(0)"); s.vm=[]
    def srd(s,r,off,size):
        s.e(f"s_load_dwordx2 s[{r}:{r+1}], s[0:1], {off}\ns_mov_b32 s{r+2}, {hex(size)}\ns_mov_b32 s{r+3}, 0x00020000")
    def fin(s):
        out=[]; hist=[]
        pos=0
        for l in s.L:
            if l.endswith(':'):
                out.append(l); continue
            op=l.split()[0]; rest=l[len(op):]
            ops=[x.strip() for x in rest.split(',')]
            ismf=op.startswith('v_mfma'); isv=op.startswith('v_') and not ismf
            isvm=op.startswith('buffer_') or op.startswith('global_'); isds=op.startswith('ds_')
            st=('store' in op) or op.startswith('ds_write') or (' lds' in l)
            if op=='s_nop':
                pos+=int(ops[0])+1; out.append(l); continue
            if st: dst=[]; src=regs(rest)
            elif op.startswith('v_cmp') : dst=regs(ops[0]); src=regs(','.join(ops[1:]))
            elif 'swap' in op: dst=regs(rest); src=dst
            elif op.startswith('s_cmp') or op.startswith('s_cbranch') or op in('s_barrier','s_waitcnt','s_branch','s_endpgm','s_setprio'): dst=[]; src=regs(rest)
            else:
                dst=regs(ops[0]); src=regs(','.join(ops[1:]))
                if op in('v_fmac_f32','v_dot2c_f32_bf16') or 'dpp' in l or 'row_' in l: src=src+dst
                if op.startswith('v_cndmask') and len(ops)==3: src.append('vcc')
                if op.startswith('v_add_co') or op.startswith('v_addc'): dst=dst+['vcc']
            if 'cbranch_vcc' in op: src=['vcc']
            if ' lds' in l: src.append('m0')
            need=0
            def req(p,n):
                nonlocal need
                need=max(need,n-(pos-p-1))
            sset=set(src); dset=set(dst)
            for (p,k,r) in hist:
                if pos-p>14: continue
                if k=='valu':
                    hs=r&sset
                    if hs:
                        hv=[x for x in hs if x[0]=='v' and x!='vcc']; hsg=[x for x in hs if not(x[0]=='v' and x!='vcc')]
                        if hv:
                            if ismf: req(p,2)
                            if 'swap' in op or 'dpp' in l or 'row_' in l: req(p,2)
                            if 'readfirstlane' in op or 'readlane' in op: req(p,1)
                        if hsg:
                            if isvm: req(p,5)
                            elif isv or ismf: req(p,2)
                            else: req(p,2)
                elif k=='trans':
                    if r&sset and (isv or ismf or isvm or isds): req(p,1)
                elif k in('mf8','mf4'):
                    n=12 if k=='mf8' else 8
                    if ismf:
                        ab=set(regs(ops[1])+regs(ops[2])); c=set(regs(ops[3]))
                        if r&ab: req(p,n)
                        if (r&c and c!=r) or (r&dset and dset!=r): req(p,n)
                        elif r&dset and c!=r: req(p,n)
                    elif (r&sset or r&dset): req(p,n)
                elif k in('mc8','mc4'):
                    if (isv or isds or isvm) and r&dset: req(p,7 if k=='mc8' else 3)
                elif k=='mab':
                    if (isv or isds or isvm) and r&dset: req(p,2)
                elif k=='dot':
                    if (r&sset or r&dset) and 'dot2' not in op: req(p,3)
                elif k=='m0':
                    if 'm0' in sset and (isvm or isds): req(p,1)
                elif k=='st':
                    if (isv or ismf) and r&dset: req(p,2)
                elif k=='salu':
                    pass
            while need>0:
                n=min(need,8); out.append(f"s_nop {n-1}"); pos+=n; need-=n
            out.append(l)
            if ismf:
                p8='32x32' in op
                hist.append((pos,'mf8' if p8 else 'mf4',dset)); hist.append((pos,'mc8' if p8 else 'mc4',set(regs(ops[3]))-dset))
                hist.append((pos,'mab',set(regs(ops[1])+regs(ops[2]))))
            elif isv:
                hist.append((pos,'valu',dset))
                if 'dot2' in op: hist.append((pos,'dot',dset))
                if op in TRANS: hist.append((pos,'trans',dset))
            elif 'm0' in dset: hist.append((pos,'m0',dset))
            if st and (isvm or isds) and ' lds' not in l: hist.append((pos,'st',set(regs(ops[0] if isvm else ops[1]))))
            pos+=1
            hist=[h for h in hist if pos-h[0]<=14]
        n=s.name
        txt=f".globl {n}\n.p2align 8\n.type {n},@function\n{n}:\n"+"\n".join(out)+f"\nL_{n}_end:\ns_endpgm\n"
        kd=f""".p2align 6
.amdhsa_kernel {n}
  .amdhsa_next_free_vgpr {s.nv}
  .amdhsa_next_free_sgpr 102
  .amdhsa_accum_offset {s.nv}
  .amdhsa_group_segment_fixed_size 0
  .amdhsa_kernarg_size 112
  .amdhsa_user_sgpr_count 2
  .amdhsa_user_sgpr_kernarg_segment_ptr 1
  .amdhsa_system_sgpr_workgroup_id_x 1
.end_amdhsa_kernel
"""
        return f"; @launch kernel={n} grid=({s.nwg},1,1) block=({s.nthr},1,1) lds={s.lds}\n",txt,kd
def write(ks,path):
    a=[k.fin() for k in ks]
    o="".join(x[0] for x in a)+'.amdgcn_target "amdgcn-amd-amdhsa--gfx950"\n.text\n'+"".join(x[1] for x in a)+'.section .rodata,"a"\n'+"".join(x[2] for x in a)
    open(path,'w').write(o); return len(o)
```

```python
from base import *
WS=0x10000000
def gemm(name,woff,Ktot,act):
    KR=Ktot//4; NST=KR//64; NS=NST*2; KC=Ktot//8; ROT=4; SL=36864; BO=20480; PFJ=12
    k=K(name,256,512,4*SL,256)
    k.srd(4,woff,Ktot*1152); k.srd(12,104,WS)
    k.e(f"""s_and_b32 s16, s2, 3
    s_bfe_u32 s17, s2, 0x10002
    s_lshr_b32 s18, s2, 3
    s_and_b32 s19, s18, 3
    s_lshr_b32 s18, s18, 2
    s_lshl_b32 s17, s17, 3
    s_add_u32 s17, s17, s18
    v_lshrrev_b32 v1, 6, v0
    v_and_b32 v2, 63, v0
    v_readfirstlane_b32 s20, v1
    s_lshl_b32 s21, s17, 2
    s_cmp_lt_u32 s20, 4
    s_cbranch_scc1 L_{name}_cons
    s_and_b32 s20, s20, 3
    s_add_u32 s21, s21, s20
    s_lshl_b32 s30, s20, 10
    s_lshl_b32 s29, s20, 12
    s_mul_i32 s31, s16, {KR*1152}
    s_mul_i32 s22, s19, 288
    s_add_u32 s31, s31, s22
    s_mul_i32 s32, s21, {KC*512}
    s_mul_i32 s22, s16, {KR//8*512}
    s_add_u32 s32, s32, s22
    s_add_u32 s32, s32, {act}
    s_add_u32 s37, s31, {NST*64*1152}
    s_add_u32 s38, s32, {NST*4096}
    s_mul_i32 s34, s19, {ROT*64*1152}
    s_add_u32 s34, s34, s31
    s_mul_i32 s35, s19, {ROT*4096}
    s_add_u32 s35, s35, s32
    v_and_b32 v3, 255, v0
    v_lshlrev_b32 v19, 4, v2""")
    for i in range(5):
        k.e(f"""v_add_u32 v4, {256*i}, v3
        v_min_u32 v4, 1151, v4
        v_mul_u32_u24 v5, 3641, v4
        v_lshrrev_b32 v5, 16, v5
        v_mul_u32_u24 v6, 18, v5
        v_sub_u32 v6, v4, v6
        v_and_b32 v7, 0x73, v5
        v_and_b32 v8, 4, v5
        v_lshl_or_b32 v7, v8, 1, v7
        v_and_b32 v8, 8, v5
        v_lshrrev_b32 v8, 1, v8
        v_or_b32 v7, v7, v8
        v_mul_u32_u24 v7, 1152, v7
        v_lshl_add_u32 v{10+i}, v6, 4, v7""")
    k.e("s_waitcnt lgkmcnt(0)")
    def dma(st):
        if st: k.e(f"s_add_u32 s34, s34, {64*1152}\ns_cmp_eq_u32 s34, s37\ns_cselect_b32 s34, s31, s34\ns_add_u32 s35, s35, 4096\ns_cmp_eq_u32 s35, s38\ns_cselect_b32 s35, s32, s35")
        for i in range(5):
            k.e(f"s_add_u32 m0, s30, {(st%4)*SL+i*4096}")
            k.vmm(f"buffer_load_dwordx4 v{10+i}, s[4:7], s34 offen lds",st)
        k.e(f"s_add_u32 m0, s29, {(st%4)*SL+BO}")
        for i in range(4): k.vmm(f"buffer_load_dwordx4 v19, s[12:15], s35 offen offset:{i*1024} lds",st)
    dma(0); dma(1); k.nv_(0); k.e("s_barrier"); dma(2); dma(3)
    for s in range(1,NST):
        k.nv_(s); k.e("s_barrier")
        if s+3<NST: dma(s+3)
    k.e(f"s_waitcnt vmcnt(0)\ns_endpgm\nL_{name}_cons:")
    k.e(f"""s_add_u32 s21, s21, s20
    s_mul_i32 s33, s21, {72*512}
    s_mul_i32 s22, s19, {18*512}
    s_add_u32 s33, s33, s22
    s_mul_i32 s22, s16, {PSZ}
    s_add_u32 s33, s33, s22
    s_add_u32 s33, s33, {P1 if woff==32 else P2}
    v_lshrrev_b32 v4, 4, v2
    v_and_b32 v5, 15, v2
    v_lshlrev_b32 v5, 4, v5
    v_lshl_add_u32 v19, v4, 9, v5
    v_lshl_add_u32 v19, v1, 12, v19
    v_add_u32 v25, {BO}, v19
    v_add_u32 v26, {BO+2*SL}, v19
    v_lshrrev_b32 v6, 1, v4
    v_lshl_add_u32 v24, v6, 9, v5
    v_and_b32 v7, 1, v4
    v_lshl_add_u32 v24, v7, 3, v24
    v_bfe_u32 v8, v2, 2, 2
    v_lshl_add_u32 v8, v7, 2, v8
    v_lshl_add_u32 v8, v6, 4, v8
    v_mul_u32_u24 v8, 288, v8
    v_and_b32 v9, 3, v2
    v_lshl_add_u32 v20, v9, 3, v8
    v_add_u32 v21, {2*SL}, v20
    s_waitcnt lgkmcnt(0)""")
    def rd(j):
        st=j//2; Sx=j%2; o=[]; so=(st&1)*SL; hi=(st%4)>>1
        for u in range(2):
            r=176+8*(j%2)+4*u
            o.append((f"ds_read_b128 v[{r}:{r+3}], v{25+hi} offset:{so+Sx*2048+u*256}",(j,0)))
        for t in range(9):
            for e in range(2):
                r=32+36*(j%2)+4*t+2*e
                o.append((f"ds_read_b64_tr_b16 v[{r}:{r+1}], v{20+hi} offset:{so+e*2304+Sx*9216+t*32}",(j,t)))
        return o
    if woff==32:
        k.e("s_load_dwordx2 s[24:25], s[0:1], 48\ns_load_dwordx2 s[28:29], s[0:1], 56\ns_mov_b32 s26, 576*9216\ns_mov_b32 s27, 0x00020000")
        k.e('''v_mul_u32_u24 v10, 57, v2
        v_lshrrev_b32 v10, 9, v10
        v_mul_u32_u24 v11, 9, v10
        v_sub_u32 v11, v2, v11
        v_min_u32 v12, 1, v10
        v_mul_u32_u24 v10, 9216, v10
        v_lshl_add_u32 v10, v11, 7, v10
        v_add_u32 v12, 7, v12
        v_mul_u32_u24 v12, 9216, v12
        v_lshl_add_u32 v12, v11, 7, v12
        s_and_b32 s40, s2, 7
        s_mul_i32 s40, s40, 1152
        s_lshr_b32 s41, s2, 3
        s_lshl_b32 s41, s41, 1
        s_and_b32 s42, s20, 1
        s_add_u32 s41, s41, s42
        s_mul_i32 s41, s41, 9*9216
        s_add_u32 s40, s40, s41
        s_waitcnt lgkmcnt(0)
        s_cmp_lt_u32 s20, 2
        s_cselect_b32 s24, s24, s28
        s_cselect_b32 s25, s25, s29''')
    if TT: k.e("v_and_b32 v27, 3, v2\nv_mul_u32_u24 v27, 3068, v27\nbuffer_load_dword v28, v27, s[12:15], s33 offen")
    k.e("s_barrier"); k.stamp()
    for x in rd(0): k.lgk(*x)
    for j in range(NS):
        q1=[]
        if woff==32 and j==PFJ and 'G' not in NP: k.e('buffer_load_dword v13, v10, s[24:27], s40 offen\nbuffer_load_dword v14, v12, s[24:27], s40 offen')
        if j+1<NS:
            if (j+1)%2==0: k.e("s_barrier")
            q1=rd(j+1)
        for t in range(9):
            k.nl((j,t))
            for u in range(2):
                a=104+36*u+4*t; A=32+36*(j%2)+4*t; B=176+8*(j%2)+4*u
                k.e(f"v_mfma_f32_16x16x32_bf16 v[{a}:{a+3}], v[{A}:{A+3}], v[{B}:{B+3}], {'0' if j==0 else f'v[{a}:{a+3}]'}")
                for _ in range(2):
                    if q1: k.lgk(*q1.pop(0))
    k.stamp()
    for t in range(9):
        if t%4==0: k.e(f"s_add_u32 s36, s33, {t*1024}")
        for u in range(2):
            a=104+36*u+4*t; d=32+4*t+2*u
            k.e(f"v_cvt_pk_bf16_f32 v{d}, v{a}, v{a+1}\nv_cvt_pk_bf16_f32 v{d+1}, v{a+2}, v{a+3}")
            k.e(f"buffer_store_dwordx2 v[{d}:{d+1}], v24, s[12:15], s36 offen offset:{(t%4)*1024+u*256}")
    k.done(); k.e('s_waitcnt vmcnt(0)'); return k

def gemm8(name,woff,Ktot,act):
    KR=Ktot//8; NST=KR//64; NS=NST*2; KC=Ktot//8; ROT=2; BO=20480; SL=BO+32768
    k=K(name,256,512,3*SL,256)
    k.srd(4,woff,Ktot*1152); k.srd(12,104,WS)
    k.e(f"""s_and_b32 s16, s2, 7
    s_lshr_b32 s18, s2, 3
    s_and_b32 s19, s18, 3
    s_lshr_b32 s17, s18, 2
    v_lshrrev_b32 v1, 6, v0
    v_and_b32 v2, 63, v0
    v_readfirstlane_b32 s20, v1
    s_lshl_b32 s21, s17, 3
    s_cmp_lt_u32 s20, 4
    s_cbranch_scc1 L_{name}_cons
    s_and_b32 s20, s20, 3
    s_lshl_b32 s22, s20, 1
    s_add_u32 s21, s21, s22
    s_lshl_b32 s30, s20, 10
    s_lshl_b32 s29, s20, 13
    s_mul_i32 s31, s16, {KR*1152}
    s_mul_i32 s22, s19, 288
    s_add_u32 s31, s31, s22
    s_mul_i32 s32, s21, {KC*512}
    s_mul_i32 s22, s16, {KR//8*512}
    s_add_u32 s32, s32, s22
    s_add_u32 s32, s32, {act}
    s_add_u32 s37, s31, {NST*64*1152}
    s_add_u32 s38, s32, {NST*4096}
    s_mul_i32 s34, s19, {ROT*64*1152}
    s_add_u32 s34, s34, s31
    s_mul_i32 s35, s19, {ROT*4096}
    s_add_u32 s35, s35, s32
    v_and_b32 v3, 255, v0
    v_lshlrev_b32 v19, 4, v2""")
    for i in range(5):
        k.e(f"""v_add_u32 v4, {256*i}, v3
        v_min_u32 v4, 1151, v4
        v_mul_u32_u24 v5, 3641, v4
        v_lshrrev_b32 v5, 16, v5
        v_mul_u32_u24 v6, 18, v5
        v_sub_u32 v6, v4, v6
        v_and_b32 v7, 0x73, v5
        v_and_b32 v8, 4, v5
        v_lshl_or_b32 v7, v8, 1, v7
        v_and_b32 v8, 8, v5
        v_lshrrev_b32 v8, 1, v8
        v_or_b32 v7, v7, v8
        v_mul_u32_u24 v7, 1152, v7
        v_lshl_add_u32 v{10+i}, v6, 4, v7""")
    k.e("s_waitcnt lgkmcnt(0)")
    def dma(st):
        if st: k.e(f"s_add_u32 s34, s34, {64*1152}\ns_cmp_eq_u32 s34, s37\ns_cselect_b32 s34, s31, s34\ns_add_u32 s35, s35, 4096\ns_cmp_eq_u32 s35, s38\ns_cselect_b32 s35, s32, s35")
        for i in range(5):
            k.e(f"s_add_u32 m0, s30, {(st%3)*SL+i*4096}")
            k.vmm(f"buffer_load_dwordx4 v{10+i}, s[4:7], s34 offen lds",st)
        k.e(f"s_add_u32 s36, s35, {KC*512}")
        for z in range(2):
            k.e(f"s_add_u32 m0, s29, {(st%3)*SL+BO+z*4096}")
            for i in range(4): k.vmm(f"buffer_load_dwordx4 v19, s[12:15], s{35+z} offen offset:{i*1024} lds",st)
    dma(0); dma(1); k.nv_(0); k.e("s_barrier"); dma(2)
    for s in range(1,NST):
        k.nv_(s); k.e("s_barrier")
        if s+2<NST: dma(s+2)
    k.e(f"s_waitcnt vmcnt(0)\ns_endpgm\nL_{name}_cons:")
    k.e(f"""s_lshl_b32 s22, s20, 1
    s_add_u32 s21, s21, s22
    s_mul_i32 s33, s21, {72*512}
    s_mul_i32 s22, s19, {18*512}
    s_add_u32 s33, s33, s22
    s_mul_i32 s22, s16, {PSZ}
    s_add_u32 s33, s33, s22
    s_add_u32 s33, s33, {P1 if woff==32 else P2}
    v_lshrrev_b32 v14, 4, v2
    v_and_b32 v15, 15, v2
    v_lshlrev_b32 v15, 4, v15
    v_lshl_add_u32 v19, v14, 9, v15
    v_lshl_add_u32 v19, v1, 13, v19
    v_add_u32 v3, {BO}, v19
    v_add_u32 v4, {BO+2*SL}, v19
    v_lshrrev_b32 v16, 1, v14
    v_lshl_add_u32 v5, v16, 9, v15
    v_and_b32 v17, 1, v14
    v_lshl_add_u32 v5, v17, 3, v5
    v_bfe_u32 v18, v2, 2, 2
    v_lshl_add_u32 v18, v17, 2, v18
    v_lshl_add_u32 v18, v16, 4, v18
    v_mul_u32_u24 v18, 288, v18
    v_and_b32 v19, 3, v2
    v_lshl_add_u32 v6, v19, 3, v18
    v_add_u32 v7, {2*SL}, v6
    s_waitcnt lgkmcnt(0)""")
    AB=8; BB=80; AC=112
    def rd(j):
        st=j//2; Sx=j%2; o=[]; sl=st%3; so=(sl&1)*SL; hi=sl>>1
        for u in range(4):
            r=BB+16*(j%2)+4*u
            o.append((f"ds_read_b128 v[{r}:{r+3}], v{3+hi} offset:{so+Sx*2048+(u>>1)*4096+(u&1)*256}",(j,0)))
        for t in range(9):
            for e in range(2):
                r=AB+36*(j%2)+4*t+2*e
                o.append((f"ds_read_b64_tr_b16 v[{r}:{r+1}], v{6+hi} offset:{so+e*2304+Sx*9216+t*32}",(j,t)))
        return o
    k.e("s_barrier"); k.stamp()
    for x in rd(0): k.lgk(*x)
    for j in range(NS):
        q1=[]
        if j+1<NS:
            if (j+1)%2==0: k.e("s_barrier")
            q1=rd(j+1)
        for t in range(9):
            k.nl((j,t))
            for u in range(4):
                a=AC+36*u+4*t; A=AB+36*(j%2)+4*t; B=BB+16*(j%2)+4*u
                k.e(f"v_mfma_f32_16x16x32_bf16 v[{a}:{a+3}], v[{A}:{A+3}], v[{B}:{B+3}], {'0' if j==0 else f'v[{a}:{a+3}]'}")
                if q1: k.lgk(*q1.pop(0))
                if j==NS-1 and t>=1:
                    a=AC+36*u+4*(t-1); epi(k,a,a,t-1,u)
    k.stamp()
    for u in range(4): epi(k,AC+36*u+32,AC+36*u+32,8,u)
    k.done(); k.e('s_waitcnt vmcnt(0)'); return k
def epi(k,a,d,t,u):
    if t%4==0 and u%2==0: k.e(f"s_add_u32 s{40+(u>>1)}, s33, {t*1024+(u>>1)*72*512}")
    k.e(f"v_cvt_pk_bf16_f32 v{d}, v{a}, v{a+1}\nv_cvt_pk_bf16_f32 v{d+1}, v{a+2}, v{a+3}")
    k.e(f"buffer_store_dwordx2 v[{d}:{d+1}], v5, s[12:15], s{40+(u>>1)} offen offset:{(t%4)*1024+(u&1)*256}")
```

```python
from base import *
WS=0x10000000
def unpack(k,d,s,n=4):
    for i in range(n):
        k.e(f"v_lshlrev_b32 v{d+2*i}, 16, v{s+i}\nv_and_b32 v{d+2*i+1}, 0xffff0000, v{s+i}")
def red3(k,r,t,first_dpp=True):
    k.e(f"v_add_f32_dpp v{r}, v{r}, v{r} row_ror:8 row_mask:0xf bank_mask:0xf")
    for sw in ('v_permlane16_swap_b32','v_permlane32_swap_b32'):
        k.e(f"v_mov_b32 v{t}, v{r}\n{sw} v{r}, v{t}\nv_add_f32 v{r}, v{r}, v{t}")
def k0a():
    k=K('k0a_kernel',54 if 'D' in NP else 320,512,8192,128)
    k.e("s_cmp_lt_u32 s2, 54\ns_cbranch_scc1 L_k0a_main\ns_cmp_lt_u32 s2, 64\ns_cbranch_scc1 L_k0a_kernel_end")
    k.srd(4,24,576*8192); k.srd(8,0,2048*1152)
    k.e('''s_sub_u32 s20, s2, 64
    s_and_b32 s21, s20, 3
    s_lshr_b32 s20, s20, 3
    v_lshrrev_b32 v1, 7, v0
    v_and_b32 v2, 127, v0
    v_lshlrev_b32 v2, 4, v2
    v_lshl_add_u32 v2, v1, 13, v2
    s_mul_i32 s22, s20, 18*8192
    s_lshl_b32 s23, s21, 11
    s_add_u32 s22, s22, s23
    v_lshlrev_b32 v3, 4, v0
    s_lshl_b32 s23, s21, 2
    s_lshr_b32 s24, s20, 3
    s_add_u32 s23, s23, s24
    s_lshl_b32 s23, s23, 19
    s_and_b32 s24, s20, 7
    s_lshl_b32 s24, s24, 14
    s_add_u32 s23, s23, s24
    s_add_u32 s23, s23, 1536*256
    s_waitcnt lgkmcnt(0)''')
    if 'S' in NP: k.e('s_sleep 16')
    for i in range(5):
        k.e(f"buffer_load_dwordx4 v[{4+4*i}:{7+4*i}], v2, s[4:7], s22 offen\ns_add_u32 s22, s22, {(4 if i<3 else 2)*8192}")
    if 'X' not in NP: k.e("v_min_u32 v3, 71, v0\nv_lshlrev_b32 v3, 7, v3\ns_sub_u32 s23, s2, 64\ns_mul_i32 s23, s23, 9216\nbuffer_load_dword v24, v3, s[8:11], s23 offen")
    k.e("s_waitcnt vmcnt(0)\ns_endpgm\nL_k0a_main:")
    k.srd(4,72,1152); k.srd(8,80,576*3456*2); k.srd(12,104,WS)
    k.e("""v_lshrrev_b32 v1, 6, v0
    v_and_b32 v2, 63, v0
    v_lshrrev_b32 v3, 3, v2
    v_mul_u32_u24 v4, 72, v1
    v_add_u32 v4, v4, v3
    v_lshlrev_b32 v5, 1, v4
    v_mul_u32_u24 v6, 6912, v4
    v_and_b32 v7, 7, v0
    v_lshlrev_b32 v7, 4, v7
    v_add_u32 v6, v6, v7
    s_lshl_b32 s16, s2, 7
    s_waitcnt lgkmcnt(0)""")
    for i in range(9): k.vmm(f"buffer_load_ushort v{10+i}, v5, s[4:7], 0 offen offset:{16*i}",'c')
    for i in range(9):
        k.vmm(f"buffer_load_dwordx4 v[{20+4*i}:{23+4*i}], v6, s[8:11], s16 offen",('w',i))
        k.e(f"s_add_u32 s16, s16, {8*6912}")
    k.nv_('c')
    for i in range(9):
        c=10+i
        k.e(f"""v_lshlrev_b32 v{c}, 16, v{c}
        v_mul_f32 v60, 0xbfb8aa3b, v{c}
        v_exp_f32 v60, v60
        v_add_f32 v60, 1.0, v60
        v_rcp_f32 v60, v60
        v_mul_f32 v{c}, v{c}, v60
        v_cvt_pk_bf16_f32 v{c}, v{c}, v{c}
        v_lshlrev_b32 v{c}, 16, v{c}""")
    for j in range(8): k.e(f"v_mov_b32 v{64+j}, 0")
    for i in range(9):
        k.nv_(('w',i)); unpack(k,72,20+4*i)
        for j in range(8): k.e(f"v_fmac_f32 v{64+j}, v{72+j}, v{10+i}")
    for j in range(8): red3(k,64+j,80+j)
    k.e("""v_lshlrev_b32 v8, 8, v1
    v_lshlrev_b32 v9, 5, v2
    v_add_u32 v8, v8, v9
    v_cmp_gt_u32 vcc, 8, v2
    s_and_saveexec_b64 s[20:21], vcc
    ds_write_b128 v8, v[64:67]
    ds_write_b128 v8, v[68:71] offset:16
    s_mov_b64 exec, s[20:21]
    s_waitcnt lgkmcnt(0)
    s_barrier
    v_readfirstlane_b32 s22, v1
    s_cmp_lg_u32 s22, 0
    s_cbranch_scc1 L_k0a_kernel_end
    v_lshlrev_b32 v8, 2, v2""")
    for i in range(8): k.e(f"ds_read_b32 v{64+i}, v8 offset:{256*i}")
    k.e("s_waitcnt lgkmcnt(0)")
    for i in range(1,8): k.e(f"v_add_f32 v64, v64, v{64+i}")
    k.e(f"""v_cvt_pk_bf16_f32 v64, v64, v64
    v_lshlrev_b32 v64, 16, v64
    s_lshl_b32 s16, s2, 8
    buffer_store_dword v64, v8, s[12:15], s16 offen offset:{MOD}""")
    k.done(); return k
def rk(name,mode):
    k=K(name,512 if mode==0 and 'A' not in NP else 256,576,1024,128)
    if mode==0:
        k.e("s_cmp_lt_u32 s2, 256\ns_cbranch_scc1 L_k0b_main")
        k.srd(8,8,16*2048*256); k.srd(16,16,16*2048*256)
        k.e('''s_sub_u32 s20, s2, 256
        s_and_b32 s21, s20, 3
        s_lshr_b32 s20, s20, 3
        v_min_u32 v3, 511, v0
        v_lshlrev_b32 v3, 4, v3
        s_lshl_b32 s23, s21, 2
        s_lshr_b32 s24, s20, 3
        s_add_u32 s23, s23, s24
        s_lshl_b32 s23, s23, 19
        s_and_b32 s24, s20, 7
        s_lshl_b32 s24, s24, 14
        s_add_u32 s23, s23, s24
        s_add_u32 s23, s23, 1536*256
        s_waitcnt lgkmcnt(0)''')
        for i in range(2):
            k.e(f"buffer_load_dwordx4 v[{24+8*i}:{27+8*i}], v3, s[8:11], s23 offen\nbuffer_load_dwordx4 v[{28+8*i}:{31+8*i}], v3, s[16:19], s23 offen\ns_add_u32 s23, s23, 8192")
        k.e("s_waitcnt vmcnt(0)\ns_endpgm\nL_k0b_main:")
    k.srd(4,0,2048*1152); k.srd(12,104,WS)
    if mode==2: k.srd(8,88,2048*1152)
    if mode==1: k.srd(24,48,576*9216); k.srd(28,56,576*9216)
    k.e("""v_lshrrev_b32 v1, 3, v0
    v_and_b32 v2, 7, v0
    s_lshl_b32 s16, s2, 3
    v_add_u32 v3, s16, v2
    v_mul_u32_u24 v4, 1152, v3
    v_lshl_add_u32 v4, v1, 4, v4
    s_lshr_b32 s17, s2, 2
    s_mul_i32 s17, s17, 72*512
    v_and_b32 v5, 31, v3
    v_lshlrev_b32 v5, 4, v5
    v_lshl_add_u32 v5, v1, 9, v5
    v_add_u32 v5, s17, v5
    v_lshlrev_b32 v6, 5, v1
    s_waitcnt lgkmcnt(0)""")
    def ldmod(d,sec):
        k.e(f"s_movk_i32 s18, {MOD+sec*2304}")
        k.vmm(f"buffer_load_dwordx4 v[{d}:{d+3}], v6, s[12:15], s18 offen",'m')
        k.vmm(f"buffer_load_dwordx4 v[{d+4}:{d+7}], v6, s[12:15], s18 offen offset:16",'m')
    if mode==2:
        k.e(f"s_mov_b32 s19, {X1}"); k.vmm("buffer_load_dwordx4 v[8:11], v5, s[12:15], s19 offen",'x')
    else: k.vmm("buffer_load_dwordx4 v[8:11], v4, s[4:7], 0 offen",'x')
    if mode:
        pr=lambda p:12+4*p if p<5 else 96+4*p
        for p in range(4+4*G8):
            k.e(f"s_mov_b32 s20, {(P1 if mode==1 else P2)+p*PSZ}"); k.vmm(f"buffer_load_dwordx4 v[{pr(p)}:{pr(p)+3}], v5, s[12:15], s20 offen",('p',p))
        ldmod(32,2 if mode==1 else 5)
    if mode<2:
        ldmod(40,1 if mode==0 else 4); ldmod(48,0 if mode==0 else 3)
    if mode==1 and 'C' not in NP:
        k.e('''v_mul_u32_u24 v100, 911, v0
        v_lshrrev_b32 v100, 16, v100
        v_mul_u32_u24 v101, 72, v100
        v_sub_u32 v101, v0, v101
        v_mul_u32_u24 v100, 9216, v100
        v_lshl_add_u32 v100, v101, 4, v100
        s_and_b32 s32, s2, 7
        s_mul_i32 s32, s32, 1152
        s_lshr_b32 s33, s2, 3
        s_mul_i32 s33, s33, 18*9216
        s_add_u32 s32, s32, s33''')
        for i in range(3):
            k.vmm(f"buffer_load_dwordx4 v[112:115], v100, s[24:27], s32 offen",'pf'); k.vmm(f"buffer_load_dwordx4 v[108:111], v100, s[28:31], s32 offen",'pf')
            k.e(f"s_add_u32 s32, s32, {(8 if i==0 else 2)*9216}")
    if TT:
        if mode==2: k.e("v_and_b32 v116, 0xfffff000, v4"); k.vmm("buffer_load_dword v117, v116, s[8:11], 0 offen",'t')
        else:
            k.e("v_and_b32 v116, 0xfffff000, v5")
            for a in ([X1,H2] if mode else [Hb]): k.e(f"s_mov_b32 s19, {a}"); k.vmm("buffer_load_dword v117, v116, s[12:15], s19 offen",'t')
    k.nv_('x'); unpack(k,56,8)
    if mode:
        k.nv_(('p',0)); unpack(k,64,12)
        for p in range(1,4+4*G8):
            k.nv_(('p',p)); unpack(k,72,pr(p))
            for j in range(8): k.e(f"v_add_f32 v{64+j}, v{64+j}, v{72+j}")
        k.nv_('m')
        for j in range(8): k.e(f"v_fmac_f32 v{56+j}, v{64+j}, v{32+j}")
        for j in range(4): k.e(f"v_cvt_pk_bf16_f32 v{8+j}, v{56+2*j}, v{57+2*j}")
        if mode==2:
            k.e("buffer_store_dwordx4 v[8:11], v4, s[8:11], 0 offen"); k.done(); k.wv0(); return k
        k.e(f"s_mov_b32 s19, {X1}\nbuffer_store_dwordx4 v[8:11], v5, s[12:15], s19 offen")
        unpack(k,56,8)
    k.e("v_add_f32 v80, v56, v57\nv_mul_f32 v81, v56, v56\nv_fmac_f32 v81, v57, v57")
    for j in range(2,8): k.e(f"v_add_f32 v80, v80, v{56+j}\nv_fmac_f32 v81, v{56+j}, v{56+j}")
    red3(k,80,82); red3(k,81,83)
    k.e("""v_lshrrev_b32 v84, 6, v0
    v_lshlrev_b32 v84, 3, v84
    v_lshl_add_u32 v84, v2, 7, v84
    v_lshlrev_b32 v85, 7, v2
    ds_write_b64 v84, v[80:81]
    s_waitcnt lgkmcnt(0)
    s_barrier""")
    for w in range(9): k.e(f"ds_read_b64 v[{88+2*w}:{89+2*w}], v85 offset:{8*w}")
    k.nv_('m')
    for j in range(8): k.e(f"v_add_f32 v{40+j}, 1.0, v{40+j}")
    for j in range(4): k.e(f"v_cvt_pk_bf16_f32 v{12+j}, v{40+2*j}, v{41+2*j}")
    unpack(k,40,12)
    k.e("s_waitcnt lgkmcnt(0)")
    for w in range(1,9): k.e(f"v_add_f32 v88, v88, v{88+2*w}\nv_add_f32 v89, v89, v{89+2*w}")
    k.e("""v_mul_f32 v88, 0x3ae38e39, v88
    v_mul_f32 v89, 0x3ae38e39, v89
    v_fma_f32 v89, -v88, v88, v89
    v_max_f32 v89, 0, v89
    v_add_f32 v89, 0x3727c5ac, v89
    v_rsq_f32 v89, v89""")
    for j in range(8):
        k.e(f"v_sub_f32 v{56+j}, v{56+j}, v88\nv_mul_f32 v{40+j}, v{40+j}, v89\nv_fma_f32 v{56+j}, v{56+j}, v{40+j}, v{48+j}")
    for j in range(4): k.e(f"v_cvt_pk_bf16_f32 v{16+j}, v{56+2*j}, v{57+2*j}")
    k.e(f"s_mov_b32 s19, {Hb if mode==0 else H2}\nbuffer_store_dwordx4 v[16:19], v5, s[12:15], s19 offen")
    k.done(); k.wv0(); return k

def poll(k,lab,off,n):
    k.e(f"""s_cmp_lg_u32 s22, 0
    s_cbranch_scc1 L_{lab}_d
    s_mov_b32 s45, 0
    v_mov_b32 v2, s47
    L_{lab}_p:
    buffer_load_dword v3, v2, s[56:59], 0 offen offset:{off} sc1
    s_add_u32 s45, s45, 1
    s_waitcnt vmcnt(0)
    v_readfirstlane_b32 s46, v3
    s_cmp_ge_u32 s45, 0x8000
    s_cbranch_scc1 L_{lab}_d
    s_cmp_ge_u32 s46, {n}
    s_cbranch_scc1 L_{lab}_d
    s_sleep 2
    s_branch L_{lab}_p
    L_{lab}_d:
    s_barrier""")
def signal(k,lab,off):
    k.wv0()
    k.e(f"""s_barrier
    s_cmp_lg_u32 s22, 0
    s_cbranch_scc1 L_{lab}_s
    v_mov_b32 v2, s47
    v_mov_b32 v3, 1
    s_mov_b64 exec, 1
    buffer_atomic_add v3, v2, s[56:59], 0 offen offset:{off} sc1
    s_mov_b64 exec, -1
    L_{lab}_s:""")
def modphase_pre(k):
    k.e(f"""s_cmp_ge_u32 s2, 54
    s_cbranch_scc1 L_mod_pre
    v_lshrrev_b32 v3, 3, v0
    s_mul_i32 s101, s22, 72
    v_add_u32 v8, s101, v3
    v_lshlrev_b32 v9, 1, v8
    v_mul_u32_u24 v8, 6912, v8
    v_and_b32 v3, 7, v0
    v_lshl_add_u32 v8, v3, 4, v8
    s_lshl_b32 s100, s2, 7""")
    for i in range(9): k.vmm(f"buffer_load_ushort v{10+i}, v9, s[72:75], 0 offen offset:{16*i}",'c')
    for i in range(9):
        k.vmm(f"buffer_load_dwordx4 v[{20+4*i}:{23+4*i}], v8, s[96:99], s100 offen",('w',i))
        k.e(f"s_add_u32 s100, s100, {8*6912}")
    k.e('L_mod_pre:')
def modphase(k,LO):
    k.e('s_cmp_ge_u32 s2, 54\ns_cbranch_scc1 L_mod_end')
    k.nv_('c')
    for i in range(9):
        c=10+i
        k.e(f"""v_lshlrev_b32 v{c}, 16, v{c}
        v_mul_f32 v60, 0xbfb8aa3b, v{c}
        v_exp_f32 v60, v60
        v_add_f32 v60, 1.0, v60
        v_rcp_f32 v60, v60
        v_mul_f32 v{c}, v{c}, v60
        v_cvt_pk_bf16_f32 v{c}, v{c}, v{c}
        v_lshlrev_b32 v{c}, 16, v{c}""")
    for j in range(8): k.e(f"v_mov_b32 v{64+j}, 0")
    for i in range(9):
        k.nv_(('w',i)); unpack(k,72,20+4*i)
        for j in range(8): k.e(f"v_fmac_f32 v{64+j}, v{72+j}, v{10+i}")
    for j in range(8): red3(k,64+j,80+j)
    k.e(f"""s_lshl_b32 s45, s22, 8
    v_lshlrev_b32 v9, 5, v3
    v_add_u32 v8, s45, v9
    v_add_u32 v8, {LO}, v8
    ds_write_b128 v8, v[64:67]
    ds_write_b128 v8, v[68:71] offset:16
    s_waitcnt lgkmcnt(0)
    s_barrier
    s_cmp_lg_u32 s22, 0
    s_cbranch_scc1 L_mod_end
    v_lshlrev_b32 v8, 2, v0
    v_add_u32 v9, {LO}, v8""")
    for i in range(8): k.e(f"ds_read_b32 v{64+i}, v9 offset:{256*i}")
    k.e("s_waitcnt lgkmcnt(0)")
    for i in range(1,8): k.e(f"v_add_f32 v64, v64, v{64+i}")
    k.e(f"""v_cvt_pk_bf16_f32 v64, v64, v64
    v_lshlrev_b32 v64, 16, v64
    s_lshl_b32 s46, s2, 8
    buffer_store_dword v64, v8, s[12:15], s46 offen offset:{MOD} sc1
    s_waitcnt vmcnt(0)
    s_cmp_ge_u32 s2, 18
    s_cbranch_scc1 L_mod_end
    v_mov_b32 v2, 0
    v_mov_b32 v3, 1
    s_mov_b64 exec, 1
    buffer_atomic_add v3, v2, s[56:59], 0 offen sc1
    s_mov_b64 exec, -1
    L_mod_end:""")
def lnphase(k,mode,LO,mid,post):
    B=[96,168]
    k.e(f"""v_lshrrev_b32 v1, 3, v0
    s_lshl_b32 s45, s22, 3
    v_add_u32 v88, s45, v1
    v_add_u32 v89, 64, v1
    v_and_b32 v2, 7, v0
    v_add_u32 v3, s77, v2
    v_mul_u32_u24 v1, 1152, v3
    v_and_b32 v3, 31, v3
    v_lshlrev_b32 v3, 4, v3
    v_lshl_add_u32 v90, v88, 4, v1
    v_lshl_add_u32 v91, v89, 4, v1
    v_lshl_add_u32 v92, v88, 9, v3
    v_lshl_add_u32 v93, v89, 9, v3
    v_lshlrev_b32 v94, 5, v88
    v_lshlrev_b32 v95, 5, v89
    s_lshr_b32 s46, s77, 5
    s_mul_i32 s46, s46, 72*512
    v_add_u32 v92, s46, v92
    v_add_u32 v93, s46, v93
    v_lshlrev_b32 v88, 7, v2
    v_add_u32 v88, {LO}, v88
    v_add_u32 v89, s45, v88""")
    def ldmod(d,sec,fl=''):
        k.e(f"s_movk_i32 s45, {MOD+sec*2304}")
        for z in range(2):
            k.vmm(f"buffer_load_dwordx4 v[{B[z]+d}:{B[z]+d+3}], v{94+z}, s[12:15], s45 offen{fl}",'m')
            k.vmm(f"buffer_load_dwordx4 v[{B[z]+d+4}:{B[z]+d+7}], v{94+z}, s[12:15], s45 offen offset:16{fl}",'m')
    for z in range(2): k.vmm(f"buffer_load_dwordx4 v[{B[z]}:{B[z]+3}], v{90+z}, s[52:55], 0 offen",('x',z))
    if mode:
        for p in range(4):
            k.e(f"s_mov_b32 s45, {P1+p*PSZ}")
            for z in range(2): k.vmm(f"buffer_load_dwordx4 v[{B[z]+4+4*p}:{B[z]+7+4*p}], v{92+z}, s[12:15], s45 offen",('p',p,z))
        ldmod(20,2); ldmod(28,4); ldmod(36,3)
    mid()
    for z in range(2):
        b=B[z]; X=b+44
        k.nv_(('x',z)); unpack(k,X,b)
    if mode:
        for p in range(4):
            for z in range(2):
                b=B[z]
                k.nv_(('p',p,z)); unpack(k,b+(60 if p else 52),b+4+4*p)
                if p:
                    for j in range(8): k.e(f"v_add_f32 v{b+52+j}, v{b+52+j}, v{b+60+j}")
        k.nv_('m')
        k.e(f"s_mov_b32 s45, {X1}")
        for z in range(2):
            b=B[z]; X=b+44
            for j in range(8): k.e(f"v_fmac_f32 v{X+j}, v{b+52+j}, v{b+20+j}")
            for j in range(4): k.e(f"v_cvt_pk_bf16_f32 v{b+j}, v{X+2*j}, v{X+1+2*j}")
            k.vmm(f"buffer_store_dwordx4 v[{b}:{b+3}], v{92+z}, s[12:15], s45 offen",'s')
            unpack(k,X,b)
    for z in range(2):
        X=B[z]+44; a=240+2*z
        k.e(f"v_add_f32 v{a}, v{X}, v{X+1}\nv_mul_f32 v{a+1}, v{X}, v{X}\nv_fmac_f32 v{a+1}, v{X+1}, v{X+1}")
        for j in range(2,8): k.e(f"v_add_f32 v{a}, v{a}, v{X+j}\nv_fmac_f32 v{a+1}, v{X+j}, v{X+j}")
    k.e("s_cmp_eq_u32 s22, 0\ns_cselect_b32 s45, 1.0, 0\nv_fmac_f32 v240, s45, v242\nv_fmac_f32 v241, s45, v243")
    red3(k,240,242); red3(k,241,243)
    k.e("ds_write_b64 v89, v[240:241]\ns_waitcnt lgkmcnt(0)")
    if mode==0:
        k.e("s_mov_b32 s100, s47\ns_mov_b32 s47, 0"); poll(k,'pm',0,18); k.e("s_mov_b32 s47, s100"); k.vm=[]
        ldmod(28,1,' sc1'); ldmod(36,0,' sc1')
    else: k.e("s_barrier")
    for w in range(4): k.e(f"ds_read_b128 v[{8+4*w}:{11+4*w}], v88 offset:{16*w}")
    k.e("s_waitcnt lgkmcnt(0)")
    for w in range(1,8): k.e(f"v_add_f32 v8, v8, v{8+2*w}\nv_add_f32 v9, v9, v{9+2*w}")
    k.e("""v_mul_f32 v8, 0x3ae38e39, v8
    v_mul_f32 v9, 0x3ae38e39, v9
    v_fma_f32 v9, -v8, v8, v9
    v_max_f32 v9, 0, v9
    v_add_f32 v9, 0x3727c5ac, v9
    v_rsq_f32 v9, v9""")
    for z in range(2):
        for j in range(8): k.e(f"v_sub_f32 v{B[z]+44+j}, v{B[z]+44+j}, v8")
    k.nv_('m')
    k.e(f"s_mov_b32 s45, {Hb if mode==0 else H2}")
    for z in range(2):
        b=B[z]; X=b+44; c=b+28
        if z: k.e(f"s_cmp_lg_u32 s22, 0\ns_cbranch_scc1 L_ln_skip{mode}")
        for j in range(8): k.e(f"v_add_f32 v{c+j}, 1.0, v{c+j}")
        for j in range(4): k.e(f"v_cvt_pk_bf16_f32 v{b+4+j}, v{c+2*j}, v{c+1+2*j}")
        unpack(k,c,b+4)
        for j in range(8): k.e(f"v_mul_f32 v{c+j}, v{c+j}, v9\nv_fma_f32 v{X+j}, v{X+j}, v{c+j}, v{b+36+j}")
        for j in range(4): k.e(f"v_cvt_pk_bf16_f32 v{b+8+j}, v{X+2*j}, v{X+1+2*j}")
        k.e(f"buffer_store_dwordx4 v[{b+8}:{b+11}], v{92+z}, s[12:15], s45 offen sc1")
    k.e(f"L_ln_skip{mode}:")
    signal(k,f'sg{mode}',16); post(); sv=list(k.vm); poll(k,f'ph{mode}',16,32); k.vm=sv

def k0m():
    k=K('k0m_kernel',256,576,8192,128)
    k.srd(4,0,2048*1152); k.srd(12,104,WS); k.srd(8,80,576*6912); k.srd(16,72,1152); k.srd(24,24,576*8192); k.srd(56,96,256)
    k.e("""v_lshrrev_b32 v1, 3, v0
    v_and_b32 v2, 7, v0
    s_lshl_b32 s20, s2, 3
    v_add_u32 v3, s20, v2
    v_mul_u32_u24 v4, 1152, v3
    v_lshl_add_u32 v4, v1, 4, v4
    s_lshr_b32 s21, s2, 2
    s_mul_i32 s21, s21, 72*512
    v_and_b32 v5, 31, v3
    v_lshlrev_b32 v5, 4, v5
    v_lshl_add_u32 v5, v1, 9, v5
    v_add_u32 v5, s21, v5
    v_lshlrev_b32 v6, 5, v1
    v_lshrrev_b32 v7, 6, v0
    v_readfirstlane_b32 s22, v7
    v_bfe_u32 v8, v0, 3, 3
    v_lshl_add_u32 v8, v7, 6, v8
    v_lshlrev_b32 v9, 1, v8
    v_mul_u32_u24 v8, 6912, v8
    v_lshl_add_u32 v8, v2, 4, v8
    s_lshl_b32 s23, s2, 7
    v_lshrrev_b32 v96, 4, v0
    v_min_u32 v96, 17, v96
    v_lshlrev_b32 v96, 13, v96
    v_and_b32 v97, 15, v0
    v_lshl_add_u32 v96, v97, 7, v96
    s_lshr_b32 s28, s2, 3
    s_mul_i32 s28, s28, 18*8192
    s_and_b32 s29, s2, 3
    s_lshl_b32 s29, s29, 11
    s_add_u32 s28, s28, s29
    s_mov_b32 s47, 0
    s_waitcnt lgkmcnt(0)
    s_cmp_ge_u32 s2, 54
    s_cbranch_scc1 L_k0m_a""")
    for i in range(8): k.e(f"buffer_load_ushort v{10+i}, v9, s[16:19], 0 offen offset:{16*i}")
    for i in range(8): k.e(f"buffer_load_dwordx4 v[{20+4*i}:{23+4*i}], v8, s[8:11], s23 offen\ns_add_u32 s23, s23, {8*6912}")
    k.e("L_k0m_a:")
    k.e("buffer_load_dwordx4 v[100:103], v4, s[4:7], 0 offen")
    if TT: k.e(f"""v_and_b32 v97, 0xfffff000, v5
    s_mov_b32 s19, {Hb}
    v_mov_b32 v95, 0x8000
    buffer_load_dword v99, v95, s[12:15], 0 offen
    v_mov_b32 v94, 252
    buffer_load_dword v99, v94, s[56:59], 0 offen sc1
    buffer_load_dword v99, v97, s[12:15], s19 offen""")
    k.e("s_cmp_ge_u32 s2, 54\ns_cbranch_scc1 L_k0m_b\ns_waitcnt vmcnt(%d)"%(9+3*(TT>0)))
    for i in range(8):
        c=10+i
        k.e(f"""v_lshlrev_b32 v{c}, 16, v{c}
        v_mul_f32 v88, 0xbfb8aa3b, v{c}
        v_exp_f32 v88, v88
        v_add_f32 v88, 1.0, v88
        v_rcp_f32 v88, v88
        v_mul_f32 v{c}, v{c}, v88
        v_cvt_pk_bf16_f32 v{c}, v{c}, v{c}
        v_lshlrev_b32 v{c}, 16, v{c}""")
    for j in range(8): k.e(f"v_mov_b32 v{64+j}, 0")
    for i in range(8):
        k.e(f"s_waitcnt vmcnt({8-i+3*(TT>0)})"); unpack(k,72,20+4*i)
        for j in range(8): k.e(f"v_fmac_f32 v{64+j}, v{72+j}, v{10+i}")
    if PROF: k.e("s_memrealtime s[92:93]")
    for j in range(8): red3(k,64+j,80+j)
    k.e("""v_lshlrev_b32 v8, 8, v7
    v_lshl_add_u32 v8, v2, 5, v8
    ds_write_b128 v8, v[64:67] offset:1024
    ds_write_b128 v8, v[68:71] offset:1040
    s_waitcnt lgkmcnt(0)
    s_barrier
    s_cmp_lg_u32 s22, 0
    s_cbranch_scc1 L_k0m_b
    v_lshlrev_b32 v8, 2, v0""")
    for i in range(9): k.e(f"ds_read_b32 v{64+i}, v8 offset:{1024+256*i}")
    k.e("s_waitcnt lgkmcnt(0)")
    for i in range(1,9): k.e(f"v_add_f32 v64, v64, v{64+i}")
    k.e(f"""v_cvt_pk_bf16_f32 v64, v64, v64
    v_lshlrev_b32 v64, 16, v64
    s_lshl_b32 s23, s2, 8
    buffer_store_dword v64, v8, s[12:15], s23 offen offset:{MOD} sc1
    s_cmp_ge_u32 s2, 18
    s_cbranch_scc1 L_k0m_b
    s_waitcnt vmcnt(0)
    {'s_memrealtime s[94:95]' if PROF else ''}
    s_lshl_b32 s23, s2, 2
    v_mov_b32 v8, s23
    v_mov_b32 v9, 1
    s_mov_b64 exec, 1
    buffer_store_dword v9, v8, s[56:59], 0 offen sc1
    s_mov_b64 exec, -1
    L_k0m_b:
    buffer_load_dword v98, v96, s[24:27], s28 offen
    s_waitcnt vmcnt({1+3*(TT>0)})""")
    unpack(k,56,100)
    k.e("v_add_f32 v80, v56, v57\nv_mul_f32 v81, v56, v56\nv_fmac_f32 v81, v57, v57")
    for j in range(2,8): k.e(f"v_add_f32 v80, v80, v{56+j}\nv_fmac_f32 v81, v{56+j}, v{56+j}")
    red3(k,80,82); red3(k,81,83)
    k.e("""v_lshlrev_b32 v84, 3, v7
    v_lshl_add_u32 v84, v2, 7, v84
    v_lshlrev_b32 v85, 7, v2
    v_lshlrev_b32 v86, 3, v0
    ds_write_b64 v84, v[80:81]
    s_waitcnt lgkmcnt(0)""")
    k.stamp()
    k.e('''s_cmp_lg_u32 s22, 0
    s_cbranch_scc1 L_k0m_d
    s_mov_b32 s45, 0
    v_min_u32 v2, 17, v0
    v_lshlrev_b32 v2, 2, v2
    s_cmp_lt_u32 s2, 54
    s_cbranch_scc1 L_k0m_p
    s_sleep '''+os.environ.get('SL0','80')+'''
    L_k0m_p:
    buffer_load_dword v3, v2, s[56:59], 0 offen sc1
    s_add_u32 s45, s45, 1
    s_waitcnt vmcnt(0)
    v_cmp_ne_u32 vcc, 0, v3
    s_cmp_ge_u32 s45, 0x8000
    s_cbranch_scc1 L_k0m_d
    s_cmp_eq_u64 vcc, -1
    s_cbranch_scc1 L_k0m_d
    s_sleep '''+os.environ.get('SL1','8')+'''
    s_branch L_k0m_p
    L_k0m_d:
    s_barrier'''); k.stamp()
    k.e(f"buffer_load_dwordx2 v[8:9], v86, s[12:15], 0 offen offset:{MOD} sc1")
    for w in range(9): k.e(f"ds_read_b64 v[{100+2*w}:{101+2*w}], v85 offset:{8*w}")
    k.e("s_waitcnt lgkmcnt(0)")
    for w in range(1,9): k.e(f"v_add_f32 v100, v100, v{100+2*w}\nv_add_f32 v101, v101, v{101+2*w}")
    k.e("""v_mul_f32 v88, 0x3ae38e39, v100
    v_mul_f32 v89, 0x3ae38e39, v101
    v_fma_f32 v89, -v88, v88, v89
    v_max_f32 v89, 0, v89
    v_add_f32 v89, 0x3727c5ac, v89
    v_rsq_f32 v89, v89""")
    for j in range(8): k.e(f"v_sub_f32 v{56+j}, v{56+j}, v88")
    k.e("""s_waitcnt vmcnt(0)
    ds_write_b64 v86, v[8:9] offset:3328
    s_waitcnt lgkmcnt(0)
    s_barrier
    ds_read_b128 v[40:43], v6 offset:5632
    ds_read_b128 v[44:47], v6 offset:5648
    ds_read_b128 v[48:51], v6 offset:3328
    ds_read_b128 v[52:55], v6 offset:3344
    s_waitcnt lgkmcnt(2)""")
    for j in range(8): k.e(f"v_add_f32 v{40+j}, 1.0, v{40+j}")
    for j in range(4): k.e(f"v_cvt_pk_bf16_f32 v{12+j}, v{40+2*j}, v{41+2*j}")
    unpack(k,40,12)
    k.e("s_waitcnt lgkmcnt(0)")
    for j in range(8): k.e(f"v_mul_f32 v{40+j}, v{40+j}, v89\nv_fma_f32 v{56+j}, v{56+j}, v{40+j}, v{48+j}")
    for j in range(4): k.e(f"v_cvt_pk_bf16_f32 v{16+j}, v{56+2*j}, v{57+2*j}")
    k.e(f"s_mov_b32 s19, {Hb}\nbuffer_store_dwordx4 v[16:19], v5, s[12:15], s19 offen")
    k.done()
    k.e('s_waitcnt vmcnt(0)')
    if PROF: k.e("v_mov_b32 v1, s92\nbuffer_store_dword v1, v0, s[12:15], s78 offen offset:24\nv_mov_b32 v1, s94\nbuffer_store_dword v1, v0, s[12:15], s78 offen offset:28")
    return k
```

```python
from base import *
import struct
WS=0x10000000
def fb(x): return hex(struct.unpack('<I',struct.pack('<f',x))[0])
PACE=2; D=4; RING=20; NR=6
def taddr(k,dst,lane,extra):
    k.e(f"""v_lshrrev_b32 v1, 5, v{lane}
    v_bfe_u32 v2, v{lane}, 2, 2
    v_lshl_add_u32 v1, v1, 3, v2
    v_lshlrev_b32 v1, 8, v1
    v_bfe_u32 v3, v{lane}, 4, 1
    v_lshl_add_u32 v1, v3, 5, v1
    v_and_b32 v3, 1, v{lane}
    v_lshl_add_u32 v1, v3, 4, v1
    v_bfe_u32 v3, v{lane}, 1, 1
    v_lshl_add_u32 v1, v3, 3, v1
    v_add_u32 v1, {extra}, v1""")
    for t in range(4): k.e(f"v_xor_b32 v3, {t}, v2\nv_lshl_add_u32 v{dst+t}, v3, 6, v1")
def drive(k,items,D=D):
    N=len(items); q2=[]
    def em(x):
        if isinstance(x,str): k.e(x)
        elif x[0]=='v': k.vmm(x[1],x[2])
        elif x[0]=='f': x[1]()
    def rds(m):
        it=items[m]
        if 'ep' in it:
            for tg in it['ep'][0]: k.nv_(tg)
            k.e("s_barrier");
            it2=items[min(m+1,N-1) if m else 0]; it2.setdefault('dma',[]).extend(it['ep'][1])
            if it.get('stamp'): k.stamp()
        for r in it['rd']: k.lgk(r,m)
    for m in range(min(D,N)): rds(m)
    for m in range(N):
        it=items[m]
        for x in it.get('pre',[]): em(x)
        if 'vm' in it: k.nv_(it['vm'])
        k.nl(m); k.e(it['m'])
        if m+D<N: rds(m+D)
        q2+=it.get('dma',[])
        if m%PACE==0:
            while q2:
                x=q2.pop(0); em(x)
                if not isinstance(x,str): break
        for x in it.get('fill',[]): em(x)
    for x in q2: em(x)
def k1():
    k=K('k1_kernel',256,512,160*1024 if '1' in FUSE else 147456,256)
    k.srd(4,24,576*8192); k.srd(8,8,16*2048*256); k.srd(16,16,16*2048*256); k.srd(12,104,WS); k.srd(48,32,4096*1152); k.srd(52,0,2048*1152); k.srd(56,96,256); k.srd(72,72,1152); k.srd(96,80,576*6912)
    TB=8; KA=12; TA=44; TM=44; LS=52; LC=53; O=56; HF=120; Q=120; SB=[152,184]; P=216; NM=232
    k.e(f"""s_and_b32 s20, s2, 3
    s_lshl_b32 s20, s20, 3
    s_bfe_u32 s21, s2, 0x30003
    s_add_u32 s20, s20, s21
    s_bfe_u32 s21, s2, 0x10002
    s_lshl_b32 s21, s21, 2
    s_lshr_b32 s22, s2, 6
    s_add_u32 s21, s21, s22
    v_lshrrev_b32 v1, 6, v0
    v_and_b32 v0, 63, v0
    v_readfirstlane_b32 s22, v1
    s_lshl_b32 s23, s21, 3
    s_add_u32 s23, s23, s22
    s_lshl_b32 s30, s22, 10
    s_lshl_b32 s31, s20, 8
    s_lshl_b32 s24, s22, 15
    s_add_u32 s31, s31, s24
    s_lshr_b32 s32, s20, 1
    s_lshl_b32 s32, s32, 19
    s_add_u32 s32, s32, {1536*256}
    s_add_u32 s32, s32, s30
    s_mul_i32 s33, s23, {72*512}
    s_add_u32 s33, s33, {Hb}
    s_lshl_b32 s34, s23, 18
    s_lshl_b32 s24, s20, 13
    s_add_u32 s34, s34, s24
    s_add_u32 s34, s34, {Ob}
    s_mov_b32 s40, 0x3f803f80
    s_mov_b32 s41, {fb(2.0**24)}
    s_mov_b32 s42, {fb(1.4426950408889634/128**0.5)}
    s_bfe_u32 s25, s2, 0x20003
    v_lshlrev_b32 v7, 4, v0
    v_lshrrev_b32 v1, 4, v0
    v_and_b32 v2, 15, v0
    v_lshlrev_b32 v3, 2, v1
    v_xor_b32 v3, v3, v2
    v_lshlrev_b32 v3, 4, v3
    v_lshl_add_u32 v4, v1, 8, v3
    v_lshl_add_u32 v6, v1, 13, v3
    s_and_b32 s24, s22, 3
    s_lshl_b32 s24, s24, 2
    v_add_u32 v3, s24, v1
    v_xor_b32 v3, v3, v2
    v_lshlrev_b32 v3, 4, v3
    v_lshl_add_u32 v5, v1, 8, v3
    s_waitcnt lgkmcnt(0)""")
    for p in range(4):
        k.e(f"s_add_u32 s26, s25, {p}\ns_and_b32 s26, s26, 3\ns_lshl_b32 s27, s26, 20\ns_add_u32 s{60+p}, s31, s27\ns_lshl_b32 s27, s26, 13\ns_add_u32 s{64+p}, s33, s27")
    k.e(f"s_add_u32 s68, s33, 32768")
    slot={('W',0):0,('W',1):2,('W',2):1,('W',3):3,('W',4):4}
    for c in range(4): slot[('K',c)]=c&1; slot[('V',c)]=2+(c&1)
    def dma(tag):
        o=[]; ty,c=tag; n=2 if tag==('W',4) else 4
        for i in range(n):
            if ty=='W': o.append(f"s_add_u32 s35, s31, {(c*128+i*32)*8192}" if c==4 else f"s_add_u32 s35, s{60+c}, {i*32*8192}")
            else: o.append(f"s_add_u32 s35, s32, {c*32768+i*8192}")
            o.append(f"s_add_u32 m0, s30, {slot[tag]*32768+i*8192}")
            vo,sr={'W':(6,4),'K':(5,8),'V':(4,16)}[ty]
            o.append(('v',f"buffer_load_dwordx4 v{vo}, s[{sr}:{sr+3}], s35 offen lds",tag))
        return o
    def hl(s0,n):
        o=[]
        for s in range(s0,s0+n):
            if s%4==0: o.append(f"s_add_u32 s36, s{64+s//8}, {(s%8)*1024}")
            r=HF+4*(s%32); o.append(('v',f"buffer_load_dwordx4 v[{r}:{r+3}], v7, s[12:15], s36 offen offset:{(s%4)*1024}{' sc1' if '1' in FUSE else ''}",('h',s)))
        return o
    import small
    def emx(L):
        for x in L: k.e(x) if isinstance(x,str) else k.vmm(x[1],x[2])
    k.e("s_lshl_b32 s77, s21, 8\ns_lshl_b32 s45, s20, 3\ns_add_u32 s77, s77, s45\ns_lshl_b32 s47, s21, 4")
    def mid():
        k.e('''s_lshl_b32 s45, s22, 2
        v_lshrrev_b32 v1, 4, v0
        v_add_u32 v1, s45, v1
        v_min_u32 v1, 17, v1
        v_lshlrev_b32 v1, 13, v1
        v_and_b32 v2, 15, v0
        v_lshl_add_u32 v1, v2, 7, v1
        s_lshr_b32 s45, s2, 3
        s_mul_i32 s45, s45, 18*8192
        s_and_b32 s46, s2, 3
        s_lshl_b32 s46, s46, 11
        s_add_u32 s45, s45, s46''')
        sv=list(k.vm); small.modphase_pre(k)
        k.vmm("buffer_load_dword v87, v1, s[4:7], s45 offen",'pf')
        small.modphase(k,149504); k.vm=sv+['pf']
    if '1' in FUSE:
        small.lnphase(k,0,147456,mid,lambda:emx(dma(('W',0))+dma(('W',1))))
        k.stamp()
    else: emx(dma(('W',0)))
    emx(hl(0,8))
    taddr(k,TA,0,0); taddr(k,TB,0,65536)
    k.e(f"""v_and_b32 v1, 0x13, v0
    v_and_b32 v2, 4, v0
    v_lshl_or_b32 v1, v2, 1, v1
    v_bfe_u32 v2, v0, 3, 1
    v_lshl_or_b32 v1, v2, 2, v1
    v_and_b32 v2, 15, v1
    v_lshrrev_b32 v3, 5, v0
    v_xor_b32 v2, v2, v3
    v_lshlrev_b32 v2, 4, v2
    v_lshl_add_u32 v{KA}, v1, 8, v2""")
    for s in range(1,8): k.e(f"v_xor_b32 v{KA+s}, {32*s}, v{KA}")
    items=[]
    def ring(): return RING+4*(len(items)%NR)
    def trd(base,off):
        r=ring(); return [f"ds_read_b64_tr_b16 v[{r}:{r+1}], v{base} offset:{off}",f"ds_read_b64_tr_b16 v[{r+2}:{r+3}], v{base} offset:{off+1024}"]
    def mf(d,b,c):
        r=ring(); return f"v_mfma_f32_32x32x16_bf16 v[{d}:{d+15}], v[{r}:{r+3}], v[{b}:{b+3}], {c}"
    def qconv(t):
        o=[]
        for j in range(8):
            a=O+16*t+2*j
            o+=[f"v_mul_f32 v{a}, s42, v{a}",f"v_mul_f32 v{a+1}, s42, v{a+1}",f"v_cvt_pk_bf16_f32 v{Q+8*t+j+16}, v{a}, v{a+1}"]
        return o
    Q2=Q+16
    SBx=[168,200]; Px=232; NMx=120
    eps={0:([('W',0)],([] if '1' in FUSE else dma(('W',1)))+hl(8,8)+dma(('W',2))+hl(16,8)+dma(('W',3))+hl(24,8)),1:([('W',1)],dma(('W',4))+hl(32,4)+dma(('K',0))),2:([('W',2)],dma(('V',0))),3:([('W',3)],dma(('K',1))),4:([('W',4),('K',0)],dma(('V',1)))}
    for st in range(5):
        order=[(s,t) for s in range(8) for t in range(4)] if st<4 else [(s,t) for t in range(4) for s in range(4)]
        for n,(s,t) in enumerate(order):
            sl=slot[('W',st)]; base=(TA if sl in(0,1,4) else TB)+t; gs=st*8+s
            a=O+16*t
            it=dict(rd=trd(base,(sl&1)*32768*(sl<4)+s*4096),m=mf(a,HF+4*(gs%32),'0' if gs==0 else f"v[{a}:{a+15}]"),vm=('h',gs),fill=[])
            if n==0: it['ep']=eps[st]; it['stamp']=st in(4,)
            if st==3 and n==8: it['fill']=[f"v_add_u32 v{TA+i}, 0x20000, v{TA+i}" for i in range(4)]
            if st==4 and t>=1:
                it['fill']=qconv(t-1)[6*s:6*s+6]
            items.append(it)
    def Smf(u,first_fill=None):
        c=u>>1
        for s in range(8):
            for kt in range(2):
                r=ring(); a=SBx[u&1]+16*kt
                cc=(f"v[{NMx}:{NMx+15}]" if u else '0') if s==0 else f"v[{a}:{a+15}]"
                items.append(dict(rd=[f"ds_read_b128 v[{r}:{r+3}], v{KA+s} offset:{(32*kt+64*(u&1))*256+(c&1)*32768}"],m=mf(a,Q2+4*s,cc),fill=[]))
    def PV(u):
        c=u>>1
        for ks,dt in ([(a_,b_) for a_ in range(4) for b_ in range(4)] if u<7 else [(a_,b_) for b_ in range(4) for a_ in range(4)]):
            if 1:
                a=O+16*dt
                items.append(dict(rd=trd(TB+dt,(64*(u&1)+16*ks)*256+(c&1)*32768),m=mf(a,Px+4*ks,'0' if (u==0 and ks==0) else f"v[{a}:{a+15}]"),fill=[]))
    def smg(u,g):
        ks=g>>2; j=g&3; a=SBx[u&1]+16*(ks>>1)+8*(ks&1)+2*j; t=TM+2*(g%4); p=Px+g
        return [f"v_exp_f32 v{t}, v{a}",f"v_exp_f32 v{t+1}, v{a+1}"],[f"v_cvt_pk_bf16_f32 v{p}, v{t}, v{t+1}"]+([f"v_add_f32 v{LC}, v{t}, v{t+1}"] if g==0 else [f"v_add_f32 v{LC}, v{LC}, v{t}",f"v_add_f32 v{LC}, v{LC}, v{t+1}"])
    def maxtree(b,d,t):
        o=[f"v_max3_f32 v{d}, v{b}, v{b+1}, v{b+2}",f"v_max3_f32 v{t}, v{b+3}, v{b+4}, v{b+5}"]
        for i in range(6,30,4): o+=[f"v_max3_f32 v{d}, v{d}, v{b+i}, v{b+i+1}",f"v_max3_f32 v{t}, v{t}, v{b+i+2}, v{b+i+3}"]
        o+=[f"v_max3_f32 v{d}, v{d}, v{b+30}, v{b+31}",f"v_max_f32 v{d}, v{d}, v{t}",f"v_mov_b32 v{t}, v{d}",f"v_permlane32_swap_b32 v{d}, v{t}",f"v_max_f32 v{d}, v{d}, v{t}"]
        return o
    n0=len(items); Smf(0)
    qc=qconv(3)
    for i in range(6): items[n0+2+i]['fill']=qc[4*i:4*i+4]
    pro=maxtree(SBx[0],54,55)+[f"v_sub_f32 v{NMx+i}, 0, v54" for i in range(16)]+[f"v_mov_b32 v{LS}, 0"]
    pf=["s_and_b32 s43, s2, 3","s_lshl_b32 s43, s43, 5","s_lshr_b32 s44, s2, 3","s_add_u32 s43, s43, s44","s_lshl_b32 s43, s43, 3","s_add_u32 s43, s43, s22","s_mul_i32 s43, s43, 4608"]
    pf+=["v_min_u32 v248, 35, v0","v_lshlrev_b32 v248, 7, v248",('v',f"buffer_load_dword v249, v248, s[48:51], s43 offen",'pf')]
    if 'E' in NP: pf=[]
    if TT: pf+=['v_and_b32 v250, 1, v0','v_lshlrev_b32 v250, 12, v250',('v','buffer_load_dword v251, v250, s[12:15], s34 offen','pf')]
    def pfl(sr,per):
        if 'B' in NP: return []
        o=["s_lshl_b32 s43, s2, 3","s_add_u32 s43, s43, s22",f"s_mul_i32 s43, s43, {per}"]
        for off in (0,1024,per-1024): o.append(('v',f"buffer_load_dwordx4 v[248:251], v7, s[{sr}:{sr+3}], s43 offen offset:{off}",'pf'))
        return o
    bar={1:([('K',1),('V',0)],dma(('K',2))),3:([('K',2),('V',1)],dma(('K',3))+dma(('V',2))),5:([('K',3),('V',2)],dma(('V',3))+pf),7:([('V',3)],[])}
    for u in range(9):
        n0=len(items)
        if u>=1: PV(u-1)
        if u<=6: Smf(u+1)
        n=len(items)-n0
        if u in bar: items[n0]['ep']=bar[u]; items[n0]['stamp']=u in(1,7)
        pre=[]
        if u==0: pre=pro
        if u>=2: pre=[f"v_cmp_nle_f32 vcc, v{LC}, s41",f"s_cbranch_vccnz L_fb{u-1}",f"L_ret{u-1}:"]
        if u>=1: pre.append(f"v_add_f32 v{LS}, v{LS}, v{LC}")
        items[n0]['pre']=pre
        if u<8:
            for g in range(16):
                e,cv=smg(u,g)
                if u==0:
                    a=SBx[0]+2*g; e=[f"v_sub_f32 v{a}, v{a}, v54",f"v_sub_f32 v{a+1}, v{a+1}, v54"]+e
                if n==32: pe=(7*g)//4; pc=max(4,pe+2)
                elif u==0: pe=min(g,14); pc=pe+1
                else: pe=min(g,14) if g>=4 else max(g-1,0); pc=min(4*(g>>2)+4,15)
                items[n0+pe]['fill']+=e
                items[n0+pc].setdefault('fill2',[]).extend(cv)
    for it in items: it['fill']=it.get('fill2',[])+it['fill']
    def oepi(dt,hf):
        o=[]; d=SBx[0]+8*dt+4*hf
        for j in range(4):
            a=O+16*dt+8*hf+2*j
            o+=[f"v_mul_f32 v{a}, v{a}, v{LS}",f"v_mul_f32 v{a+1}, v{a+1}, v{LS}",f"v_cvt_pk_bf16_f32 v{d+j}, v{a}, v{a+1}"]
        return o+[('v',f"buffer_store_dwordx4 v[{d}:{d+3}], v7, s[12:15], s{36+(dt>>1)} offen offset:{(dt%2)*2048+hf*1024}",'st')]
    n0=len(items)-16
    items[n0]['fill']+=[f"v_mov_b32 v54, v{LS}","s_mov_b32 s36, s34","s_add_u32 s37, s34, 4096",f"v_permlane32_swap_b32 v{LS}, v54"]
    items[n0+1]['fill']+=[f"v_add_f32 v{LS}, v{LS}, v54",f"v_rcp_f32 v{LS}, v{LS}"]
    for dt in range(3):
        for hf in range(2): items[n0+4*dt+6+hf]['fill']+=oepi(dt,hf)
    drive(k,items)
    for hf in range(2):
        for x in oepi(3,hf): k.e(x if isinstance(x,str) else x[1])
    k.done(); k.e("s_waitcnt vmcnt(0)\ns_endpgm")
    for u in range(1,8):
        k.e(f"L_fb{u}:\ns_nop 7\ns_nop 7")
        for x in maxtree(SBx[u&1],54,55): k.e(x)
        k.e(f"v_max_f32 v54, 0, v54\nv_sub_f32 v55, 0, v54\nv_exp_f32 v55, v55\ns_nop 0\nv_mul_f32 v{LS}, v{LS}, v55")
        for i in range(64): k.e(f"v_mul_f32 v{O+i}, v{O+i}, v55")
        for i in range(16): k.e(f"v_sub_f32 v{NMx+i}, v{NMx+i}, v54")
        for i in range(64): k.e(f"v_sub_f32 v{SBx[0]+i}, v{SBx[0]+i}, v54")
        for g in range(16):
            e,cv=smg(u,g)
            for x in e+cv: k.e(x)
        k.e(f"s_nop 1\ns_branch L_ret{u}")
    return k
```

```python
from base import *
WS=0x10000000
def gemm(name,woff,Ktot,act):
    KR=Ktot//4; NST=KR//64; NS=NST*2; KC=Ktot//8; ROT=4; SL=36864; BO=20480; PFJ=12
    k=K(name,256,512,4*SL,256)
    k.srd(4,woff,Ktot*1152); k.srd(12,104,WS)
    k.e(f"""s_and_b32 s16, s2, 3
    s_bfe_u32 s17, s2, 0x10002
    s_lshr_b32 s18, s2, 3
    s_and_b32 s19, s18, 3
    s_lshr_b32 s18, s18, 2
    s_lshl_b32 s17, s17, 3
    s_add_u32 s17, s17, s18
    v_lshrrev_b32 v1, 6, v0
    v_and_b32 v2, 63, v0
    v_readfirstlane_b32 s20, v1
    s_lshl_b32 s21, s17, 2
    s_cmp_lt_u32 s20, 4
    s_cbranch_scc1 L_{name}_cons
    s_and_b32 s20, s20, 3
    s_add_u32 s21, s21, s20
    s_lshl_b32 s30, s20, 10
    s_lshl_b32 s29, s20, 12
    s_mul_i32 s31, s16, {KR*1152}
    s_mul_i32 s22, s19, 288
    s_add_u32 s31, s31, s22
    s_mul_i32 s32, s21, {KC*512}
    s_mul_i32 s22, s16, {KR//8*512}
    s_add_u32 s32, s32, s22
    s_add_u32 s32, s32, {act}
    s_add_u32 s37, s31, {NST*64*1152}
    s_add_u32 s38, s32, {NST*4096}
    s_mul_i32 s34, s19, {ROT*64*1152}
    s_add_u32 s34, s34, s31
    s_mul_i32 s35, s19, {ROT*4096}
    s_add_u32 s35, s35, s32
    v_and_b32 v3, 255, v0
    v_lshlrev_b32 v19, 4, v2""")
    for i in range(5):
        k.e(f"""v_add_u32 v4, {256*i}, v3
        v_min_u32 v4, 1151, v4
        v_mul_u32_u24 v5, 3641, v4
        v_lshrrev_b32 v5, 16, v5
        v_mul_u32_u24 v6, 18, v5
        v_sub_u32 v6, v4, v6
        v_and_b32 v7, 0x73, v5
        v_and_b32 v8, 4, v5
        v_lshl_or_b32 v7, v8, 1, v7
        v_and_b32 v8, 8, v5
        v_lshrrev_b32 v8, 1, v8
        v_or_b32 v7, v7, v8
        v_mul_u32_u24 v7, 1152, v7
        v_lshl_add_u32 v{10+i}, v6, 4, v7""")
    k.e("s_waitcnt lgkmcnt(0)")
    def dma(st):
        if st: k.e(f"s_add_u32 s34, s34, {64*1152}\ns_cmp_eq_u32 s34, s37\ns_cselect_b32 s34, s31, s34\ns_add_u32 s35, s35, 4096\ns_cmp_eq_u32 s35, s38\ns_cselect_b32 s35, s32, s35")
        for i in range(5):
            k.e(f"s_add_u32 m0, s30, {(st%4)*SL+i*4096}")
            k.vmm(f"buffer_load_dwordx4 v{10+i}, s[4:7], s34 offen lds",st)
        k.e(f"s_add_u32 m0, s29, {(st%4)*SL+BO}")
        for i in range(4): k.vmm(f"buffer_load_dwordx4 v19, s[12:15], s35 offen offset:{i*1024} lds",st)
    dma(0); dma(1); k.nv_(0); k.e("s_barrier"); dma(2); dma(3)
    for s in range(1,NST):
        k.nv_(s); k.e("s_barrier")
        if s+3<NST: dma(s+3)
    k.e(f"s_waitcnt vmcnt(0)\ns_endpgm\nL_{name}_cons:")
    k.e(f"""s_add_u32 s21, s21, s20
    s_mul_i32 s33, s21, {72*512}
    s_mul_i32 s22, s19, {18*512}
    s_add_u32 s33, s33, s22
    s_mul_i32 s22, s16, {PSZ}
    s_add_u32 s33, s33, s22
    s_add_u32 s33, s33, {P1 if woff==32 else P2}
    v_lshrrev_b32 v4, 4, v2
    v_and_b32 v5, 15, v2
    v_lshlrev_b32 v5, 4, v5
    v_lshl_add_u32 v19, v4, 9, v5
    v_lshl_add_u32 v19, v1, 12, v19
    v_add_u32 v25, {BO}, v19
    v_add_u32 v26, {BO+2*SL}, v19
    v_lshrrev_b32 v6, 1, v4
    v_lshl_add_u32 v24, v6, 9, v5
    v_and_b32 v7, 1, v4
    v_lshl_add_u32 v24, v7, 3, v24
    v_bfe_u32 v8, v2, 2, 2
    v_lshl_add_u32 v8, v7, 2, v8
    v_lshl_add_u32 v8, v6, 4, v8
    v_mul_u32_u24 v8, 288, v8
    v_and_b32 v9, 3, v2
    v_lshl_add_u32 v20, v9, 3, v8
    v_add_u32 v21, {2*SL}, v20
    s_waitcnt lgkmcnt(0)""")
    def rd(j):
        st=j//2; Sx=j%2; o=[]; so=(st&1)*SL; hi=(st%4)>>1
        for u in range(2):
            r=176+8*(j%2)+4*u
            o.append((f"ds_read_b128 v[{r}:{r+3}], v{25+hi} offset:{so+Sx*2048+u*256}",(j,0)))
        for t in range(9):
            for e in range(2):
                r=32+36*(j%2)+4*t+2*e
                o.append((f"ds_read_b64_tr_b16 v[{r}:{r+1}], v{20+hi} offset:{so+e*2304+Sx*9216+t*32}",(j,t)))
        return o
    if woff==32:
        k.e("s_load_dwordx2 s[24:25], s[0:1], 48\ns_load_dwordx2 s[28:29], s[0:1], 56\ns_mov_b32 s26, 576*9216\ns_mov_b32 s27, 0x00020000")
        k.e('''v_mul_u32_u24 v10, 57, v2
        v_lshrrev_b32 v10, 9, v10
        v_mul_u32_u24 v11, 9, v10
        v_sub_u32 v11, v2, v11
        v_min_u32 v12, 1, v10
        v_mul_u32_u24 v10, 9216, v10
        v_lshl_add_u32 v10, v11, 7, v10
        v_add_u32 v12, 7, v12
        v_mul_u32_u24 v12, 9216, v12
        v_lshl_add_u32 v12, v11, 7, v12
        s_and_b32 s40, s2, 7
        s_mul_i32 s40, s40, 1152
        s_lshr_b32 s41, s2, 3
        s_lshl_b32 s41, s41, 1
        s_and_b32 s42, s20, 1
        s_add_u32 s41, s41, s42
        s_mul_i32 s41, s41, 9*9216
        s_add_u32 s40, s40, s41
        s_waitcnt lgkmcnt(0)
        s_cmp_lt_u32 s20, 2
        s_cselect_b32 s24, s24, s28
        s_cselect_b32 s25, s25, s29''')
    if TT: k.e("v_and_b32 v27, 3, v2\nv_mul_u32_u24 v27, 3068, v27\nbuffer_load_dword v28, v27, s[12:15], s33 offen")
    k.e("s_barrier"); k.stamp()
    for x in rd(0): k.lgk(*x)
    for j in range(NS):
        q1=[]
        if woff==32 and j==PFJ and 'G' not in NP: k.e('buffer_load_dword v13, v10, s[24:27], s40 offen\nbuffer_load_dword v14, v12, s[24:27], s40 offen')
        if j+1<NS:
            if (j+1)%2==0: k.e("s_barrier")
            q1=rd(j+1)
        for t in range(9):
            k.nl((j,t))
            for u in range(2):
                a=104+36*u+4*t; A=32+36*(j%2)+4*t; B=176+8*(j%2)+4*u
                k.e(f"v_mfma_f32_16x16x32_bf16 v[{a}:{a+3}], v[{A}:{A+3}], v[{B}:{B+3}], {'0' if j==0 else f'v[{a}:{a+3}]'}")
                for _ in range(2):
                    if q1: k.lgk(*q1.pop(0))
    k.stamp()
    k.e("v_lshrrev_b32 v24, 5, v2\nv_lshlrev_b32 v24, 9, v24\nv_and_b32 v26, 31, v2\nv_lshl_add_u32 v24, v26, 4, v24")
    for t in range(10):
        if t<9:
            for u in range(2):
                a=104+36*u+4*t; d=32+4*t+2*u
                k.e(f"v_cvt_pk_bf16_f32 v{d}, v{a}, v{a+1}\nv_cvt_pk_bf16_f32 v{d+1}, v{a+2}, v{a+3}")
        if t:
            q=t-1; d=32+4*q
            if q%4==0: k.e(f"s_add_u32 s36, s33, {q*1024}")
            k.e(f"v_permlane16_swap_b32 v{d}, v{d+2}\nv_permlane16_swap_b32 v{d+1}, v{d+3}")
            k.e(f"buffer_store_dwordx4 v[{d}:{d+3}], v24, s[12:15], s36 offen offset:{(q%4)*1024}")
    k.done(); k.e('s_waitcnt vmcnt(0)'); return k

def gemm8(name,woff,Ktot,act):
    KR=Ktot//8; NST=KR//64; NS=NST*2; KC=Ktot//8; ROT=2; BO=20480; SL=BO+32768
    k=K(name,256,512,3*SL,256)
    k.srd(4,woff,Ktot*1152); k.srd(12,104,WS)
    k.e(f"""s_and_b32 s16, s2, 7
    s_lshr_b32 s18, s2, 3
    s_and_b32 s19, s18, 3
    s_lshr_b32 s17, s18, 2
    v_lshrrev_b32 v1, 6, v0
    v_and_b32 v2, 63, v0
    v_readfirstlane_b32 s20, v1
    s_lshl_b32 s21, s17, 3
    s_cmp_lt_u32 s20, 4
    s_cbranch_scc1 L_{name}_cons
    s_and_b32 s20, s20, 3
    s_lshl_b32 s22, s20, 1
    s_add_u32 s21, s21, s22
    s_lshl_b32 s30, s20, 10
    s_lshl_b32 s29, s20, 13
    s_mul_i32 s31, s16, {KR*1152}
    s_mul_i32 s22, s19, 288
    s_add_u32 s31, s31, s22
    s_mul_i32 s32, s21, {KC*512}
    s_mul_i32 s22, s16, {KR//8*512}
    s_add_u32 s32, s32, s22
    s_add_u32 s32, s32, {act}
    s_add_u32 s37, s31, {NST*64*1152}
    s_add_u32 s38, s32, {NST*4096}
    s_mul_i32 s34, s19, {ROT*64*1152}
    s_add_u32 s34, s34, s31
    s_mul_i32 s35, s19, {ROT*4096}
    s_add_u32 s35, s35, s32
    v_and_b32 v3, 255, v0
    v_lshlrev_b32 v19, 4, v2""")
    for i in range(5):
        k.e(f"""v_add_u32 v4, {256*i}, v3
        v_min_u32 v4, 1151, v4
        v_mul_u32_u24 v5, 3641, v4
        v_lshrrev_b32 v5, 16, v5
        v_mul_u32_u24 v6, 18, v5
        v_sub_u32 v6, v4, v6
        v_and_b32 v7, 0x73, v5
        v_and_b32 v8, 4, v5
        v_lshl_or_b32 v7, v8, 1, v7
        v_and_b32 v8, 8, v5
        v_lshrrev_b32 v8, 1, v8
        v_or_b32 v7, v7, v8
        v_mul_u32_u24 v7, 1152, v7
        v_lshl_add_u32 v{10+i}, v6, 4, v7""")
    k.e("s_waitcnt lgkmcnt(0)")
    def dma(st):
        if st: k.e(f"s_add_u32 s34, s34, {64*1152}\ns_cmp_eq_u32 s34, s37\ns_cselect_b32 s34, s31, s34\ns_add_u32 s35, s35, 4096\ns_cmp_eq_u32 s35, s38\ns_cselect_b32 s35, s32, s35")
        for i in range(5):
            k.e(f"s_add_u32 m0, s30, {(st%3)*SL+i*4096}")
            k.vmm(f"buffer_load_dwordx4 v{10+i}, s[4:7], s34 offen lds",st)
        k.e(f"s_add_u32 s36, s35, {KC*512}")
        for z in range(2):
            k.e(f"s_add_u32 m0, s29, {(st%3)*SL+BO+z*4096}")
            for i in range(4): k.vmm(f"buffer_load_dwordx4 v19, s[12:15], s{35+z} offen offset:{i*1024} lds",st)
    dma(0); dma(1); k.nv_(0); k.e("s_barrier"); dma(2)
    for s in range(1,NST):
        k.nv_(s); k.e("s_barrier")
        if s+2<NST: dma(s+2)
    k.e(f"s_waitcnt vmcnt(0)\ns_endpgm\nL_{name}_cons:")
    k.e(f"""s_lshl_b32 s22, s20, 1
    s_add_u32 s21, s21, s22
    s_mul_i32 s33, s21, {72*512}
    s_mul_i32 s22, s19, {18*512}
    s_add_u32 s33, s33, s22
    s_mul_i32 s22, s16, {PSZ}
    s_add_u32 s33, s33, s22
    s_add_u32 s33, s33, {P1 if woff==32 else P2}
    v_lshrrev_b32 v14, 4, v2
    v_and_b32 v15, 15, v2
    v_lshlrev_b32 v15, 4, v15
    v_lshl_add_u32 v19, v14, 9, v15
    v_lshl_add_u32 v19, v1, 13, v19
    v_add_u32 v3, {BO}, v19
    v_add_u32 v4, {BO+2*SL}, v19
    v_lshrrev_b32 v16, 1, v14
    v_lshl_add_u32 v5, v16, 9, v15
    v_and_b32 v17, 1, v14
    v_lshl_add_u32 v5, v17, 3, v5
    v_bfe_u32 v18, v2, 2, 2
    v_lshl_add_u32 v18, v17, 2, v18
    v_lshl_add_u32 v18, v16, 4, v18
    v_mul_u32_u24 v18, 288, v18
    v_and_b32 v19, 3, v2
    v_lshl_add_u32 v6, v19, 3, v18
    v_add_u32 v7, {2*SL}, v6
    s_waitcnt lgkmcnt(0)""")
    AB=8; BB=80; AC=112
    def rd(j):
        st=j//2; Sx=j%2; o=[]; sl=st%3; so=(sl&1)*SL; hi=sl>>1
        for u in range(4):
            r=BB+16*(j%2)+4*u
            o.append((f"ds_read_b128 v[{r}:{r+3}], v{3+hi} offset:{so+Sx*2048+(u>>1)*4096+(u&1)*256}",(j,0)))
        for t in range(9):
            for e in range(2):
                r=AB+36*(j%2)+4*t+2*e
                o.append((f"ds_read_b64_tr_b16 v[{r}:{r+1}], v{6+hi} offset:{so+e*2304+Sx*9216+t*32}",(j,t)))
        return o
    k.e("s_barrier"); k.stamp()
    for x in rd(0): k.lgk(*x)
    for j in range(NS):
        q1=[]
        if j+1<NS:
            if (j+1)%2==0: k.e("s_barrier")
            q1=rd(j+1)
        for t in range(9):
            k.nl((j,t))
            for u in range(4):
                a=AC+36*u+4*t; A=AB+36*(j%2)+4*t; B=BB+16*(j%2)+4*u
                k.e(f"v_mfma_f32_16x16x32_bf16 v[{a}:{a+3}], v[{A}:{A+3}], v[{B}:{B+3}], {'0' if j==0 else f'v[{a}:{a+3}]'}")
                if q1: k.lgk(*q1.pop(0))
                if j==NS-1 and t>=1:
                    a=AC+36*u+4*(t-1); epi(k,a,a,t-1,u)
    k.stamp()
    for u in range(4): epi(k,AC+36*u+32,AC+36*u+32,8,u)
    k.done(); k.e('s_waitcnt vmcnt(0)'); return k
def epi(k,a,d,t,u):
    if t%4==0 and u%2==0: k.e(f"s_add_u32 s{40+(u>>1)}, s33, {t*1024+(u>>1)*72*512}")
    k.e(f"v_cvt_pk_bf16_f32 v{d}, v{a}, v{a+1}\nv_cvt_pk_bf16_f32 v{d+1}, v{a+2}, v{a+3}")
    k.e(f"buffer_store_dwordx2 v[{d}:{d+1}], v5, s[12:15], s{40+(u>>1)} offen offset:{(t%4)*1024+(u&1)*256}")
```

```python
from base import *
from attn import drive, fb
WS=0x10000000
def k3():
    k=K('k3_kernel',256,512,6*24832+1024,256)
    SL=24832; UP=12288+128; RING=12; NR=9; ACC=48; HF=112
    k.srd(4,48,576*9216); k.e("s_load_dwordx2 s[8:9], s[0:1], 56"); k.srd(12,104,WS); k.srd(48,64,4608*1152); k.srd(52,0,2048*1152); k.srd(56,96,256)
    kk=2*0.7978845608028654*1.4426950408889634
    if 'Y' in NP: k.e("s_mov_b32 s3, s2")
    else: k.e("""s_and_b32 s3, s2, 3
    s_lshl_b32 s3, s3, 1
    s_bfe_u32 s20, s2, 0x10005
    s_or_b32 s3, s3, s20
    s_and_b32 s20, s2, 0x18
    s_or_b32 s3, s3, s20
    s_lshr_b32 s20, s2, 6
    s_lshl_b32 s20, s20, 5
    s_or_b32 s3, s3, s20
    s_bfe_u32 s20, s2, 0x10002
    s_lshl_b32 s20, s20, 7
    s_or_b32 s3, s3, s20""")
    k.e(f"""s_and_b32 s20, s3, 7
    s_bfe_u32 s21, s3, 0x20003
    s_lshr_b32 s23, s3, 5
    v_lshrrev_b32 v1, 6, v0
    v_and_b32 v0, 63, v0
    v_readfirstlane_b32 s22, v1
    s_lshl_b32 s23, s23, 3
    s_add_u32 s23, s23, s22
    s_and_b32 s24, s22, 3
    s_lshr_b32 s25, s22, 2
    s_mul_i32 s30, s25, {UP}
    s_lshl_b32 s26, s24, 10
    s_add_u32 s30, s30, s26
    s_mul_i32 s31, s20, 1152
    s_lshl_b32 s26, s21, 5
    s_add_u32 s32, s31, s26
    s_add_u32 s32, s32, 1024
    s_lshl_b32 s26, s21, 8
    s_add_u32 s31, s31, s26
    s_mul_i32 s26, s24, {8*9216}
    s_add_u32 s31, s31, s26
    s_and_b32 s26, s24, 1
    s_mul_i32 s26, s26, {8*9216}
    s_add_u32 s32, s32, s26
    s_mul_i32 s33, s23, {72*512}
    s_add_u32 s33, s33, {H2}
    s_mul_i32 s34, s23, {576*512}
    s_mul_i32 s26, s20, {72*512}
    s_add_u32 s34, s34, s26
    s_add_u32 s34, s34, {HH}
    s_lshl_b32 s26, s21, 10
    s_add_u32 s37, s34, s26
    s_add_u32 s37, s37, {64*512}
    s_lshl_b32 s26, s21, 13
    s_add_u32 s34, s34, s26
    s_mov_b32 s40, {fb(-kk*0.044715)}
    v_lshlrev_b32 v6, 4, v0
    v_lshrrev_b32 v1, 4, v0
    v_bfe_u32 v2, v0, 1, 3
    v_and_b32 v3, 1, v0
    v_mul_u32_u24 v4, 9216, v2
    v_lshl_add_u32 v4, v3, 4, v4
    v_mul_u32_u24 v5, {16*9216}, v1
    v_add_u32 v5, v5, v4
    v_lshl_add_u32 v4, v1, 5, v4
    s_waitcnt lgkmcnt(0)
    s_cmp_eq_u32 s25, 0
    s_cselect_b32 s4, s4, s8
    s_cselect_b32 s5, s5, s9""")
    k.e("s_lshr_b32 s26, s3, 5\ns_add_u32 s26, s26, s21\ns_mul_i32 s27, s26, 43\ns_lshr_b32 s27, s27, 7\ns_mul_i32 s27, s27, 3\ns_sub_u32 s26, s26, s27\ns_lshl_b32 s27, s26, 1\ns_mul_i32 s28, s26, 3\ns_lshr_b32 s29, s24, 1\ns_add_u32 s28, s28, s29")
    for p in range(6):
        k.e(f"s_add_u32 s29, s27, {p}\ns_sub_u32 s39, s29, 6\ns_cmp_ge_u32 s29, 6\ns_cselect_b32 s29, s39, s29\ns_mul_i32 s39, s29, {96*9216}\ns_add_u32 s{60+p}, s31, s39\ns_mul_i32 s39, s29, 6144\ns_add_u32 s{66+p}, s33, s39")
    for p,a in enumerate((0,2,4,5,7)):
        k.e(f"s_add_u32 s29, s28, {a}\ns_sub_u32 s39, s29, 9\ns_cmp_ge_u32 s29, 9\ns_cselect_b32 s29, s39, s29\ns_mul_i32 s39, s29, {64*9216}\ns_add_u32 s{72+p}, s32, s39")
    def dma(S):
        o=[]
        for i in range(3 if S<13 else 2):
            if S<12: o.append(f"s_add_u32 s35, s{60+S%6}, {(32*i)*9216+(S//6)*128}")
            else: o.append(f"s_mov_b32 s35, s{72+i+3*(S-12)}")
            o.append(f"s_add_u32 m0, s30, {(S%6)*SL+i*4096}")
            o.append(('v',f"buffer_load_dwordx4 v{4 if S<12 else 5}, s[4:7], s35 offen lds",('W',S)))
        return o
    def grp(S,w=1):
        o=dma(S) if S>=2 or '3' not in FUSE else []
        if S<6:
            for s in range(6*S,6*S+6):
                if s%6 in(0,4): o.append(f"s_add_u32 s36, s{66+S}, {(s%6)*1024}")
                r=HF+4*s; o.append(('v',f"buffer_load_dwordx4 v[{r}:{r+3}], v6, s[12:15], s36 offen offset:{(s%6%4)*1024}{' sc1' if '3' in FUSE else ''}",('h',s)))
        return o
    import small
    def emx(L):
        for x in L: k.e(x) if isinstance(x,str) else k.vmm(x[1],x[2])
    k.e("s_lshr_b32 s47, s2, 5\ns_lshl_b32 s77, s47, 8\ns_and_b32 s45, s2, 31\ns_lshl_b32 s45, s45, 3\ns_add_u32 s77, s77, s45\ns_lshl_b32 s47, s47, 4")
    if '3' in FUSE:
        small.lnphase(k,1,6*SL,lambda:None,lambda:emx(dma(0)+dma(1)))
        k.stamp()
    k.e(f'''v_mov_b32 v10, {fb(-kk)}
    v_and_b32 v3, 1, v0
    v_lshrrev_b32 v1, 5, v0
    v_lshlrev_b32 v1, 10, v1
    v_bfe_u32 v2, v0, 2, 2
    v_lshl_add_u32 v1, v2, 5, v1
    v_lshl_add_u32 v1, v3, 4, v1
    v_bfe_u32 v2, v0, 1, 1
    v_lshl_add_u32 v1, v2, 3, v1
    v_bfe_u32 v2, v0, 4, 1
    v_mul_u32_u24 v2, {UP}, v2
    v_add_u32 v1, v1, v2
    v_add_u32 v2, {2*SL}, v1
    v_add_u32 v3, {4*SL}, v1
''')
    for x in grp(0): k.e(x) if isinstance(x,str) else k.vmm(x[1],x[2])
    if TT>1:
        k.e("v_and_b32 v7, 1, v0\nv_lshlrev_b32 v7, 12, v7")
        for r in (34,37): k.vmm(f"buffer_load_dword v11, v7, s[12:15], s{r} offen",'t')
    pf=["s_and_b32 s43, s2, 3","s_lshl_b32 s43, s43, 5","s_lshr_b32 s44, s2, 3","s_add_u32 s43, s43, s44","s_lshl_b32 s43, s43, 3","s_add_u32 s43, s43, s22","s_mul_i32 s43, s43, 5184","v_lshrrev_b32 v11, 4, v6","v_min_u32 v11, 40, v11","v_lshlrev_b32 v11, 7, v11",('v',"buffer_load_dword v11, v11, s[48:51], s43 offen",'pf')]
    if 'F' in NP: pf=[]
    units=[(round(sg*(1+0.2*j),3),j,sg) for j in range(4) for sg in range(6)]+[(7+sg+(j%4),j,sg) for j in range(4,8) for sg in range(6)]+[(13.5+0.5*sg,8,sg) for sg in range(6)]
    units.sort()
    last={}
    first={}
    for (tm,j,sg) in units:
        S=6*(j//4)+sg if j<8 else (12 if sg<4 else 13)
        last[S]=tm; first.setdefault(S,tm)
    nxt=[1]
    def issue(t):
        o=[]
        while nxt[0]<=13 and first[nxt[0]]<t+4 and (nxt[0]<6 or last[nxt[0]-6]<t): o+=grp(nxt[0]); nxt[0]+=1
        return o
    def epi(j):
        a=ACC+16*(j%4); o=[]
        for p in range(4):
            T=[(0,7),(8,9)][p&1]
            seq=[]
            for z in range(2):
                g=a+2*p+z; u=g+8; t=T[z]
                seq.append([f"v_mul_f32 v{t}, v{g}, v{g}",f"v_fma_f32 v{t}, v{t}, s40, v10",f"v_mul_f32 v{t}, v{t}, v{g}",f"v_exp_f32 v{t}, v{t}",
                  f"v_mul_f32 v{u}, v{g}, v{u}",f"v_add_f32 v{t}, 1.0, v{t}",f"v_rcp_f32 v{t}, v{t}"])
            for x,y in zip(*seq): o+=[x,y]
            o.append(('late',[f"v_mul_f32 v{a+8+2*p}, v{a+8+2*p}, v{T[0]}",f"v_mul_f32 v{a+9+2*p}, v{a+9+2*p}, v{T[1]}",f"v_cvt_pk_bf16_f32 v{a+p}, v{a+8+2*p}, v{a+9+2*p}"]))
        r=[]; pend=None; cnt=0
        for x in o:
            if isinstance(x,tuple): pend=x[1]; cnt=0; continue
            r.append(x); cnt+=1
            if pend and cnt==2: r+=pend; pend=None
        r+=pend
        if j<8: r+=[f"s_add_u32 s38, s34, {j*1024}"]
        r.append(('v',f"buffer_store_dwordx4 v[{a}:{a+3}], v6, s[12:15], {'s38' if j<8 else 's37'} offen",('st',j)))
        return r
    items=[]; lastt=-1; fifo=[]; owner={}
    for (tm,j,sg) in units:
        for s in range(6):
            gs=6*sg+s
            if j<8: S=6*(j//4)+sg; off=s*2048+(j%4)*256
            else:
                S=12 if gs<24 else 13; a_=(gs>>2)-(0 if gs<24 else 5); off=a_*2048+(gs&3)*256
            sl=S%6; off+=(sl&1)*SL; base=1+(sl>>1)
            r=RING+4*(len(items)%NR); a=ACC+16*(j%4)
            it=dict(rd=[f"ds_read_b64_tr_b16 v[{r}:{r+1}], v{base} offset:{off}",f"ds_read_b64_tr_b16 v[{r+2}:{r+3}], v{base} offset:{off+128}"],
                    m=f"v_mfma_f32_32x32x16_bf16 v[{a}:{a+15}], v[{r}:{r+3}], v[{HF+4*gs}:{HF+4*gs+3}], {'0' if gs==0 else f'v[{a}:{a+15}]'}",vm=('h',gs),fill=[])
            if int(tm)!=lastt:
                lastt=int(tm)
                need=[('W',S) for S in first if int(first[S])==lastt]; iss=issue(lastt)+(pf if lastt==14 else [])
                if need or iss: it['ep']=(need,iss); it['stamp']=lastt in(3,7,13)
            if gs==0 and j>=4: assert not any(o==j-4 for o,_ in fifo),j
            for _ in range(4):
                if fifo and fifo[0][0]!='w': it['fill'].append(fifo.pop(0)[1])
                elif fifo: fifo.pop(0); break
            if gs==35: fifo+=[('w',0)]*(2 if not fifo else 0)+[(j,x) for x in epi(j)]
            items.append(it)
    items[-1]['fill']+=[x for o,x in fifo if o!='w']
    print('k3 barriers',sum('ep' in i for i in items)); print(first,last); drive(k,items,7)
    k.done(); k.e('s_waitcnt vmcnt(0)')
    return k
```
